```python
import torch

def _softmax(x, axis=-1):
    return torch.softmax(x, dim=axis)
def _gelu(x):
    return torch.nn.functional.gelu(x, approximate="tanh")
def _silu(x):
    return torch.nn.functional.silu(x)
def _sigmoid(x):
    return torch.sigmoid(x)
def _layernorm(x, axis=-1, eps=1e-5):
    m = x.mean(dim=axis, keepdim=True)
    v = x.var(dim=axis, keepdim=True, unbiased=False)
    return (x - m) / torch.sqrt(v + eps)
def _scatter_add(tgt, idx, src, axis=0):
    return tgt.clone().index_add_(axis, idx, src)
def _segment_sum(src, seg, n):
    out = torch.zeros((n,) + src.shape[1:], dtype=src.dtype)
    return out.index_add_(0, seg, src)
def _pad(x, pw):
    flat = tuple(v for pair in reversed(pw) for v in pair)
    return torch.nn.functional.pad(x, flat)

kernel_name = 'recurrent_scan__sliding_block_cached__glu_gated_bilinear__prompt'

def setup_inputs():

    _w = (lambda a: (lambda t: t.to(torch.bfloat16) if t.is_floating_point() else t)(torch.as_tensor(a)))
    def _A_setup():
        B, Sq, D = 1, 2048, 448
        Hq, Hkv, Sk, Dh = 16, 8, 2048, 256
        assert Hq % Hkv == 0, (Hq, Hkv)
        return {
            "x": _w((lambda *s: torch.randn(*s, dtype=torch.bfloat16) * 0.05)(B, Sq, D)),
            "k_cache": _w((lambda *s: torch.randn(*s, dtype=torch.bfloat16) * 1.6)(B, Hkv, Sk, Dh)),
            "v_cache": _w((lambda *s: torch.randn(*s, dtype=torch.bfloat16) * 1.6)(B, Hkv, Sk, Dh)),
            "wq": _w((lambda *s: torch.randn(*s, dtype=torch.bfloat16) * 1.6)(D, Hq * Dh) * (D ** -0.5)),
            "wo": _w((lambda *s: torch.randn(*s, dtype=torch.bfloat16) * 1.6)(Hq * Dh, D) * ((Hq * Dh) ** -0.5)),
        }
    _A_in = _A_setup()

    def _B_setup():
        B, S, D, F = 1, 2048, 448, 1792
        return {
            "x": _w((lambda *s: torch.randn(*s, dtype=torch.bfloat16) * 0.05)(B, S, D)),
            "w_gate": _w((lambda *s: torch.randn(*s, dtype=torch.bfloat16) * 0.2)(D, F) * (D ** -0.5)),
            "w_up": _w((lambda *s: torch.randn(*s, dtype=torch.bfloat16) * 0.2)(D, F) * (D ** -0.5)),
            "w_down": _w((lambda *s: torch.randn(*s, dtype=torch.bfloat16) * 0.2)(F, D) * (F ** -0.5)),
        }
    _B_in = _B_setup()

    return {
        "A_x": _A_in["x"],
        "A_k_cache": _A_in["k_cache"],
        "A_v_cache": _A_in["v_cache"],
        "A_wq": _A_in["wq"],
        "A_wo": _A_in["wo"],
        "B_x": _B_in["x"],
        "B_w_gate": _B_in["w_gate"],
        "B_w_up": _B_in["w_up"],
        "B_w_down": _B_in["w_down"],
    }

def reference(A_x, A_k_cache, A_v_cache, A_wq, A_wo, B_x, B_w_gate, B_w_up, B_w_down):
    def _A_ref(x, k_cache, v_cache, wq, wo):
        B, Sq, D = x.shape
        Hq, Dh = 16, 256
        Hkv, Sk = k_cache.shape[1], k_cache.shape[2]
        W = min(4096, max(256, Sk // 4))
        rep = Hq // Hkv
        q = (lambda x, *d: x.permute(*d))((x @ wq).reshape(B, Sq, Hq, Dh), 0, 2, 1, 3)
        k = (lambda x, n, axis: torch.repeat_interleave(x, n, dim=axis))(k_cache[:, :, Sk - W:, :], rep, axis=1)
        v = (lambda x, n, axis: torch.repeat_interleave(x, n, dim=axis))(v_cache[:, :, Sk - W:, :], rep, axis=1)
        scores = torch.einsum("bhqd,bhkd->bhqk", q, k) * (Dh ** -0.5)
        p = _softmax(scores, axis=-1)
        o = torch.einsum("bhqk,bhkd->bhqd", p, v)
        return (lambda x, *d: x.permute(*d))(o, 0, 2, 1, 3).reshape(B, Sq, Hq * Dh) @ wo

    def _B_ref(x, w_gate, w_up, w_down):
        g = torch.einsum("bsd,df->bsf", x, w_gate)
        u = torch.einsum("bsd,df->bsf", x, w_up)
        h = g * u
        return torch.einsum("bsf,fd->bsd", h, w_down)

    x = A_x
    xn = _layernorm(x, axis=-1)
    s = _A_ref(xn, A_k_cache, A_v_cache, A_wq, A_wo)
    g = _silu(_B_ref(xn, B_w_gate, B_w_up, B_w_down))
    return x + s * g
```

```python
import re

TRANS = ('v_exp_f32', 'v_log_f32', 'v_rcp_f32', 'v_rsq_f32', 'v_sqrt_f32', 'v_sin_f32', 'v_cos_f32')

def regs_of(tok):
    tok = tok.strip()
    tok = tok.lstrip('-')
    if tok.startswith('abs(') and tok.endswith(')'):
        tok = tok[4:-1]
    if tok.startswith('|') and tok.endswith('|'):
        tok = tok[1:-1]
    m = re.fullmatch(r'([vas])(\d+)', tok)
    if m:
        return [m.group(1) + m.group(2)]
    m = re.fullmatch(r'([vas])\[(\d+):(\d+)\]', tok)
    if m:
        return [m.group(1) + str(i) for i in range(int(m.group(2)), int(m.group(3)) + 1)]
    if tok == 'vcc_lo': return ['vcc']
    if tok in ('vcc', 'm0', 'exec', 'scc'):
        return [tok]
    return []

class Ins:
    __slots__ = ('text', 'kind', 'w', 'r', 'ab', 'c', 'pos', 'mn')

def parse(text):
    t = text.split(';')[0].strip()
    parts = t.split(None, 1)
    mn = parts[0]
    rest = parts[1] if len(parts) > 1 else ''
    ops = [o.strip() for o in rest.split(',')] if rest else []
    mods = ''
    if ops:
        sp = ops[-1].split(None, 1)
        ops[-1] = sp[0]
        mods = sp[1] if len(sp) > 1 else ''
    I = Ins(); I.text = text; I.mn = mn; I.w = []; I.r = []; I.ab = []; I.c = []
    R = [regs_of(o) for o in ops]
    flat = lambda L: [x for l in L for x in l]
    if mn.startswith('v_mfma'):
        I.kind = 'mfma'; I.w = R[0]; I.ab = R[1] + R[2]; I.c = R[3]; I.r = I.ab + I.c
    elif mn.startswith('v_cmp'):
        I.kind = 'valu'; I.w = R[0]; I.r = flat(R[1:])
    elif mn.startswith('v_dot2c') or mn.startswith('v_fmac'):
        I.kind = 'dot' if 'dot' in mn else 'valu'; I.w = R[0]; I.r = flat(R)
    elif mn.startswith('v_dot2'):
        I.kind = 'dot'; I.w = R[0]; I.r = flat(R[1:])
    elif mn.startswith('v_permlane'):
        I.kind = 'perm'; I.w = flat(R); I.r = flat(R)
    elif mn.startswith('v_readfirstlane') or mn.startswith('v_readlane'):
        I.kind = 'rdlane'; I.w = R[0]; I.r = flat(R[1:])
    elif mn.startswith('v_'):
        I.kind = 'trans' if mn.replace('_e32', '').replace('_e64', '') in TRANS else 'valu'
        I.w = R[0]; I.r = flat(R[1:])
        if mn.startswith('v_add_co') or mn.startswith('v_addc_co'):
            I.w = R[0] + R[1]; I.r = flat(R[2:])
    elif mn.startswith('ds_read'):
        I.kind = 'dsr'; I.w = R[0]; I.r = flat(R[1:])
    elif mn.startswith('ds_write'):
        I.kind = 'dsw'; I.r = flat(R)
    elif mn.startswith('buffer_load') or mn.startswith('global_load'):
        if ' lds' in (' ' + mods):
            I.kind = 'dma'; I.r = flat(R) + ['m0']
        else:
            I.kind = 'vld'; I.w = R[0]; I.r = flat(R[1:])
    elif mn.startswith('buffer_store') or mn.startswith('global_store') or mn.startswith('buffer_atomic') or mn.startswith('global_atomic'):
        I.kind = 'vst'; I.r = flat(R); I.c = R[0]
    elif mn.startswith('buffer_') :
        I.kind = 'vmisc'
    elif mn in ('s_waitcnt', 's_barrier', 's_nop', 's_branch', 's_endpgm', 's_setprio', 's_sleep') or mn.startswith('s_cbranch'):
        I.kind = 'ctl'
        if mn.startswith('s_cbranch_vcc'): I.r = ['vcc']
    elif mn.startswith('s_cmp'):
        I.kind = 'salu'; I.r = flat(R)
    elif mn.startswith('s_load') or mn.startswith('s_memtime') or mn.startswith('s_memrealtime'):
        I.kind = 'smem'; I.w = R[0]; I.r = flat(R[1:])
    elif mn.startswith('s_'):
        I.kind = 'salu'; I.w = R[0]; I.r = flat(R[1:])
    else:
        raise ValueError('unknown instr ' + text)
    return I

VALUK = ('valu', 'trans', 'dot', 'perm', 'rdlane')

class Gen:
    def __init__(self):
        self.out = []
        self.hist = []
        self.pos = 0
        self.lg = []
        self.vm = []
        self.nnop = 0
        self.count = {}

    def raw(self, s):
        self.out.append(s)

    def label(self, name):
        self.out.append(name + ':')

    def comment(self, s):
        self.out.append('    ; ' + s)

    def fence(self):
        self.hist = []

    def _need(self, I):
        need = 0
        rs = set(I.r); ws = set(I.w); touch = rs | ws
        for P in self.hist:
            d = self.pos - P.pos - 1
            req = 0
            pw = set(P.w)
            if P.kind == 'mfma':
                if I.kind == 'mfma':
                    if pw & set(I.ab): req = max(req, 12)
                    if pw & set(I.c):
                        if I.c != P.w: req = max(req, 10)
                    if (pw & ws) and not (I.c == P.w): req = max(req, 10)
                elif I.kind in VALUK or I.kind in ('dsr', 'dsw', 'vld', 'vst', 'dma'):
                    if pw & touch: req = max(req, 12)
                if I.kind in VALUK and (set(P.c) & ws): req = max(req, 7)
            if P.kind in VALUK:
                if I.kind == 'mfma' and (pw & rs): req = max(req, 2)
                if I.kind == 'perm' and (pw & rs): req = max(req, 2)
                if I.kind == 'rdlane' and (pw & rs): req = max(req, 1)
                sw = {x for x in pw if x[0] == 's' or x == 'vcc'}
                if sw:
                    if I.kind in VALUK and (sw & rs): req = max(req, 2)
                    if I.kind in ('vld', 'vst', 'dma') and (sw & rs): req = max(req, 5)
                    if I.kind == 'salu' and (sw & rs): req = max(req, 1)
                if P.kind == 'trans' and I.kind in VALUK and I.kind != 'trans' and (pw & rs): req = max(req, 1)
                if P.kind == 'trans' and I.kind in ('mfma',) and (pw & rs): req = max(req, 2)
                if P.kind == 'dot' and (pw & touch):
                    if not (I.kind == 'dot' and I.mn == P.mn and not (pw & set(I.r[1:] if I.mn.startswith('v_dot2c') else I.r[:-1]))):
                        req = max(req, 3)
            if P.kind == 'vst' and len(P.c) >= 3 and (set(P.c) & ws):
                req = max(req, 2)
            if P.kind == 'dsw' and (set(P.r) & ws) and I.kind in VALUK:
                req = max(req, 1)
            if P.kind == 'salu' and 'm0' in pw and I.kind == 'dma':
                req = max(req, 1)
            if req > d: need = max(need, req - d)
        return need

    def _autowait(self, I):
        touch = set(I.r) | set(I.w)
        last = -1
        for i, s in enumerate(self.lg):
            if s & touch: last = i
        lastv = -1
        for i, (tag, s, st) in enumerate(self.vm):
            if s & touch: lastv = i
        if last >= 0 or lastv >= 0:
            self.wait(lg=(len(self.lg) - 1 - last) if last >= 0 else None,
                      vm=(len(self.vm) - 1 - lastv) if lastv >= 0 else None)

    def wait(self, lg=None, vm=None):
        parts = []
        if vm is not None:
            vm = min(vm, 63)
            if vm < len(self.vm):
                parts.append('vmcnt(%d)' % vm)
                self.vm = self.vm[len(self.vm) - vm:] if vm else []
        if lg is not None:
            lg = min(lg, 15)
            if lg < len(self.lg):
                parts.append('lgkmcnt(%d)' % lg)
                self.lg = self.lg[len(self.lg) - lg:] if lg else []
        if parts:
            self._emit(parse('s_waitcnt ' + ' '.join(parts)))

    def wait_regs(self, regs):
        I = Ins(); I.r = list(regs); I.w = []
        self._autowait(I)

    def wait_tag(self, tag, conservative=True):
        last = -1
        for i, (t, s, st) in enumerate(self.vm):
            if t == tag: last = i
        if last < 0: return
        younger = self.vm[last + 1:]
        n = len([1 for (t, s, st) in younger if not st]) if conservative else len(younger)
        self.wait(vm=n)

    def waitall(self):
        self._emit(parse('s_waitcnt vmcnt(0) lgkmcnt(0)'))
        self.vm = []; self.lg = []

    def _emit(self, I):
        I.pos = self.pos
        self.out.append('    ' + I.text)
        self.count[I.kind] = self.count.get(I.kind, 0) + 1
        if I.mn == 's_nop':
            self.pos += int(I.text.split()[1]) + 1
        else:
            self.pos += 1
        self.hist.append(I)
        while self.hist and self.pos - self.hist[0].pos > 24:
            self.hist.pop(0)

    def __call__(self, text, tag=None):
        I = parse(text)
        self._autowait(I)
        if I.kind in ('vld', 'dma', 'vst', 'vmisc') and len(self.vm) >= 62:
            self.wait(vm=61)
        n = self._need(I)
        while n > 0:
            k = min(n, 16)
            self._emit(parse('s_nop %d' % (k - 1)))
            self.nnop += k
            n -= k
        self._emit(I)
        if I.kind == 'dsr': self.lg.append(set(I.w))
        elif I.kind == 'dsw': self.lg.append(set())
        elif I.kind == 'vld': self.vm.append((tag, set(I.w), False))
        elif I.kind == 'dma': self.vm.append((tag, set(), False))
        elif I.kind in ('vst', 'vmisc'): self.vm.append((tag, set(), True))
        assert len(self.vm) <= 63, 'too many vmem outstanding'
        return I

def vr(b, n): return 'v[%d:%d]' % (b, b + n - 1)
def ar(b, n): return 'a[%d:%d]' % (b, b + n - 1)
def sr(b, n): return 's[%d:%d]' % (b, b + n - 1)
```

```python
import sys, struct, math
from asmlib import *

def f2h(x): return '0x%08x' % struct.unpack('<I', struct.pack('<f', x))[0]

NAME = 'recurrent_scan__sliding_block_cached__glu_gated_bilinear__prompt'
OPT = dict(stamp=0, grp='x0123456', pf=6, dmaper=3, barpos=8, hx=2, wsoff=0, tw1=1, twd=6, tkv=16, two=9, epw=12, dmo=1, vq=6,
           direct='0,1,2,5,8,11', ypace=11, ypd=40, yfl=20, ychk=90, yend=0,
           pub='110,142,174,206,222,232,233', fl='231,0,0,0', chk='234,238,242,246', flt=250, fst=256)
for a in sys.argv[2:]:
    k, v = a.split('=')
    OPT[k] = int(v) if v.lstrip('-').isdigit() else v
STF = {0: ' sc1', 1: '', 2: ' sc0 sc1', 3: ' sc1 nt', 4: ' nt'}[OPT.get('stf', 0)]

CS = math.log2(math.e) / 16.0
KINV = 1.0 / (CS * CS)
SP_BASE = OPT['wsoff'] << 20
YP_OFF = 0x1C00000
FL_BASE = SP_BASE + 0x3800000
STAMP_BASE = 0x3E00000
FST = OPT.get('fst', 4352)
WS_SIZE = 268435456
OOB = 0x40000000
TTHR = 24.0
SPIN_MAX = 1 << 17

PF = OPT['pf']
AF = [4 * i for i in range(PF)]
DV1 = list(range(28, 36)); DV2 = list(range(36, 44)); DV3 = list(range(44, 52))
VB = [[52 + 4 * s + i for i in range(4)] for s in range(3)]
VG = [64, 65, 66]
OB = [[67 + 2 * s + i for i in range(2)] for s in range(3)]
KB = [[73 + 8 * s + i for i in range(8)] for s in range(3)]
VL16 = 97; VL = 98; VA = 99; VBB = 100; VMX = 101; VRI = 102
VFO = 99; VFL = 100
T = list(range(103, 112))
NEGM = 112; ST = 112
X = 128; Q = 128; SB = [192, 208]; PB = [224, 228]
VNON = 28; VPOLL = 29; VP2 = [30, 31]; VNEED = 32; VSTEP = 33; VXO = 101
OF = 128; SACC = [192, 224]
HF = [24, 28, 32, 112, 116, 120, 124]; YB = [192, 208, 224, 240]
YACC = 76; SA = 36; XF = [60, 92]; IA = [52, 56]
HS = 64 * 28672
SX, S1, SKV, SWO, SWD, SWS, SDBG, SOUT = 28, 32, 36, 40, 44, 48, 4, 8
sW, sH, sRT, sKVH, sO1, sST1, sOKV, sOWO, sQB = 52, 53, 54, 55, 56, 57, 58, 59, 60
sT0, sT1, sT2, sONE, sMASK, sTHR, sIDX, sSP, sYP, sAD3, sT3, sT4 = 61, 62, 63, 64, 65, 66, 67, 68, 69, 70, 71, 72
sI, sCT, sRO, sOWD, sFP, sFC, sYB, sPB, sXO, sNON, sSPIN = 12, 13, 14, 15, 16, 17, 18, 19, 20, 21, 22
sWOE, sSPE, sPEND = 23, 24, 25
sRDY, sHA = 26, 27
sSTAMP = 76
NST = 42

def slot_off(stage):
    s = stage % 5
    return s // 2, (s % 2) * 32768

def srd(g, d, p, size):
    g('s_mov_b32 s%d, s%d' % (d, p))
    g('s_and_b32 s%d, s%d, 0xffff' % (d + 1, p + 1))
    g('s_mov_b32 s%d, 0x%x' % (d + 2, size))
    g('s_mov_b32 s%d, 0x20000' % (d + 3))

class Stamper:
    def __init__(self, g): self.g = g; self.n = 0
    def __call__(self, lvl=3, real=False):
        if real and lvl == 3: lvl = 7
        if (OPT['stamp'] & lvl) and self.n < 12:
            self.g('%s s[%d:%d]' % ('s_memrealtime' if (real or OPT.get('real')) else 's_memtime', sSTAMP + 2 * self.n, sSTAMP + 2 * self.n + 1))
            self.n += 1
    def dump(self, g, srdn, wgs, base, vt):
        if not OPT['stamp']: return
        g.waitall()
        g('s_lshl_b32 s%d, s%d, 2' % (sT0, wgs))
        g('s_add_u32 s%d, s%d, s%d' % (sT0, sT0, sW))
        g('s_lshl_b32 s%d, s%d, 6' % (sT0, sT0))
        g('s_add_u32 s%d, s%d, 0x%x' % (sT0, sT0, base))
        g('v_mov_b32 v%d, 0' % (vt + 1))
        for i in range(self.n):
            g('v_mov_b32 v%d, s%d' % (vt, sSTAMP + 2 * i))
            g('buffer_store_dword v%d, v%d, s[%d:%d], s%d offen offset:%d' % (vt, vt + 1, srdn, srdn + 3, sT0, 4 * i))
            g('s_nop 1')

def spread(gaps, items, lo, hi):
    n = hi - lo + 1
    m = len(items)
    for i, it in enumerate(items):
        gaps[lo + (i * n) // m].append(it)

def quota(gaps, items, lo, q):
    for i, it in enumerate(items):
        gaps[lo + i // q].append(it)

def MF(d, a, b, c): return 'v_mfma_f32_32x32x16_bf16 %s, %s, %s, %s' % (d, a, b, c)

def gen_k1():
    g = Gen(); st = Stamper(g)
    KN = NAME + '_kernel'
    g.label(KN)
    g('s_cmp_ge_u32 s2, 256')
    g('s_cbranch_scc1 L1_end')
    st(7); st(real=True)
    g('s_load_dwordx16 s[4:19], s[0:1], 0')
    g('s_load_dwordx8 s[20:27], s[0:1], 64')
    L, N, HH, R_, C_, GP, SW = 240, 241, 242, 243, 244, 245, 249
    t0, t1, t2, t3, t4 = 250, 251, 252, 253, 254
    XV = T[0:4]
    g('v_lshrrev_b32 v%d, 6, v0' % t0)
    g('v_and_b32 v%d, 63, v0' % L)
    g('v_readfirstlane_b32 s%d, v%d' % (sW, t0))
    HX = OPT['hx']; lhx = HX.bit_length() - 1
    ng = 16 // HX
    g('s_and_b32 s%d, s2, 7' % sT0)
    g('s_lshr_b32 s%d, s2, 3' % sT1)
    g('s_and_b32 s%d, s%d, %d' % (sT2, sT0, ng - 1))
    g('s_lshl_b32 s%d, s%d, %d' % (sH, sT2, lhx))
    g('s_and_b32 s%d, s%d, %d' % (sT2, sT1, HX - 1))
    g('s_add_u32 s%d, s%d, s%d' % (sH, sH, sT2))
    g('s_lshr_b32 s%d, s%d, %d' % (sT2, sT0, 4 - lhx))
    g('s_lshl_b32 s%d, s%d, %d' % (sRT, sT2, 5 - lhx))
    g('s_lshr_b32 s%d, s%d, %d' % (sT2, sT1, lhx))
    g('s_add_u32 s%d, s%d, s%d' % (sRT, sRT, sT2))
    g('s_lshr_b32 s%d, s%d, 1' % (sKVH, sH))
    g('s_lshl_b32 s%d, s%d, 13' % (sQB, sW))
    g('s_lshl_b32 s%d, s%d, 2' % (sT3, sRT))
    g('s_add_u32 s%d, s%d, s%d' % (sT3, sT3, sW))
    g('s_mul_i32 s%d, s%d, %d' % (sT4, sT3, 32 * 896))
    g('v_lshrrev_b32 v%d, 3, v%d' % (t0, L))
    g('v_and_b32 v%d, 7, v%d' % (t1, L))
    g('v_lshrrev_b32 v%d, 4, v%d' % (t2, L))
    g('v_xor_b32 v%d, v%d, v%d' % (t1, t1, t2))
    g('v_mul_u32_u24 v%d, 896, v%d' % (t0, t0))
    g('v_lshl_add_u32 v%d, v%d, 4, v%d' % (XV[0], t1, t0))
    g('v_xor_b32 v%d, 64, v%d' % (t1, XV[0]))
    g('v_add_u32 v%d, %d, v%d' % (XV[2], 2 * (7168 - 1024), XV[0]))
    g('v_add_u32 v%d, %d, v%d' % (XV[1], 7168 - 1024, t1))
    g('v_add_u32 v%d, %d, v%d' % (XV[3], 3 * (7168 - 1024), t1))
    st(2)
    g('s_waitcnt lgkmcnt(0)')
    st(2)
    srd(g, SX, 4, 2048 * 896)
    pre = []
    P = pre.append
    P('v_and_b32 v%d, 31, v%d' % (N, L))
    P('v_lshrrev_b32 v%d, 5, v%d' % (HH, L))
    P('v_bfe_u32 v%d, v%d, 2, 2' % (R_, L))
    P('v_and_b32 v%d, 3, v%d' % (C_, L))
    P('v_bfe_u32 v%d, v%d, 4, 1' % (GP, L))
    P('v_lshrrev_b32 v%d, 1, v%d' % (t0, C_))
    P('v_and_b32 v%d, 1, v%d' % (t1, C_))
    P('v_lshl_or_b32 v%d, v%d, 1, v%d' % (SW, t1, t0))
    P('v_lshl_add_u32 v%d, v%d, 3, v%d' % (t2, HH, R_))
    P('v_lshlrev_b32 v%d, 9, v%d' % (t3, t2))
    P('v_lshl_add_u32 v%d, v%d, 5, v%d' % (t3, GP, t3))
    P('v_lshl_add_u32 v%d, v%d, 3, v%d' % (t3, SW, t3))
    for i in range(4):
        P('v_xor_b32 v%d, %d, v%d' % (t4, i, R_))
        P('v_lshl_add_u32 v%d, v%d, 6, v%d' % (VB[0][i], t4, t3))
        P('v_add_u32 v%d, 0x10000, v%d' % (VB[1][i], VB[0][i]))
        P('v_add_u32 v%d, 0x20000, v%d' % (VB[2][i], VB[0][i]))
    P('v_mul_u32_u24 v%d, 224, v%d' % (t3, t2))
    P('v_mul_u32_u24 v%d, 8320, v%d' % (t4, GP))
    P('v_add_u32 v%d, v%d, v%d' % (t3, t3, t4))
    P('v_lshl_add_u32 v%d, v%d, 3, v%d' % (VG[0], SW, t3))
    P('v_add_u32 v%d, 0x10000, v%d' % (VG[1], VG[0]))
    P('v_add_u32 v%d, 0x20000, v%d' % (VG[2], VG[0]))
    P('v_lshl_add_u32 v%d, v%d, 1, v%d' % (t0, GP, t0))
    P('v_lshl_add_u32 v%d, v%d, 2, v%d' % (t0, t1, t0))
    P('v_lshlrev_b32 v%d, 3, v%d' % (t0, t0))
    P('v_lshl_add_u32 v%d, v%d, 7, v%d' % (t0, t2, t0))
    P('v_lshrrev_b32 v%d, 1, v%d' % (t1, R_))
    for i in range(2):
        P('v_xor_b32 v%d, %d, v%d' % (t4, i, t1))
        P('v_lshl_add_u32 v%d, v%d, 6, v%d' % (OB[0][i], t4, t0))
        P('v_add_u32 v%d, 0x10000, v%d' % (OB[1][i], OB[0][i]))
        P('v_add_u32 v%d, 0x20000, v%d' % (OB[2][i], OB[0][i]))
    P('v_and_b32 v%d, 0x13, v%d' % (t0, N))
    P('v_bfe_u32 v%d, v%d, 2, 1' % (t1, N))
    P('v_lshl_or_b32 v%d, v%d, 3, v%d' % (t0, t1, t0))
    P('v_bfe_u32 v%d, v%d, 3, 1' % (t1, N))
    P('v_lshl_or_b32 v%d, v%d, 2, v%d' % (t0, t1, t0))
    P('v_and_b32 v%d, 15, v%d' % (t1, t0))
    P('v_xor_b32 v%d, v%d, v%d' % (t1, t1, HH))
    P('v_lshlrev_b32 v%d, 9, v%d' % (t0, t0))
    for i in range(8):
        P('v_xor_b32 v%d, %d, v%d' % (t4, 2 * i, t1))
        P('v_lshl_add_u32 v%d, v%d, 4, v%d' % (KB[0][i], t4, t0))
        P('v_add_u32 v%d, 0x10000, v%d' % (KB[1][i], KB[0][i]))
        P('v_add_u32 v%d, 0x20000, v%d' % (KB[2][i], KB[0][i]))
    P('v_lshlrev_b32 v%d, 4, v%d' % (VL16, L))
    P('v_mov_b32 v%d, 0' % VL)
    XR = [[NEGM + 4 * s + i for i in range(4)] for s in range(2)]
    P('v_bfe_u32 v%d, v%d, 1, 3' % (t0, N))
    P('v_xor_b32 v%d, v%d, v%d' % (t0, t0, HH))
    P('v_lshlrev_b32 v%d, 7, v%d' % (t1, N))
    P('v_add_u32 v%d, s%d, v%d' % (t1, sQB, t1))
    P('v_add_u32 v%d, 0x8000, v%d' % (t1, t1))
    for i in range(4):
        P('v_xor_b32 v%d, %d, v%d' % (t4, 2 * i, t0))
        P('v_lshl_add_u32 v%d, v%d, 4, v%d' % (XR[0][i], t4, t1))
        P('v_add_u32 v%d, 0x10000, v%d' % (XR[1][i], XR[0][i]))
    P('v_and_b32 v%d, 7, v%d' % (t0, L))
    P('v_lshlrev_b32 v%d, 2, v%d' % (t1, GP))
    P('v_xor_b32 v%d, v%d, v%d' % (t0, t0, t1))
    P('v_lshlrev_b32 v%d, 4, v%d' % (t0, t0))
    P('v_lshrrev_b32 v%d, 3, v%d' % (t1, L))
    P('v_mul_u32_u24 v%d, 896, v%d' % (t1, t1))
    P('v_add_u32 v%d, v%d, v%d' % (t0, t0, t1))
    P('s_mul_i32 s%d, s%d, %d' % (sOWO, sH, 256 * 896))
    P('s_mul_i32 s%d, s%d, %d' % (sT2, sW, 64 * 896))
    P('s_add_u32 s%d, s%d, s%d' % (sOWO, sOWO, sT2))
    for i in range(8):
        P('v_add_u32 v%d, %d, v%d' % (DV3[i], 8 * i * 896 - 1024 * (i & 3), t0))
    for i in range(4): P('v_mov_b32 v%d, 0' % T[4 + i])
    npre = (len(pre) + 27) // 28
    for cb in range(7):
        g('s_add_u32 m0, s%d, %d' % (sQB, (cb // 2 + 1) * 32768 + (cb & 1) * 4096))
        for gi in range(4):
            g('buffer_load_dwordx4 v%d, s[%d:%d], s%d offen offset:%d lds' % (XV[gi], SX, SX + 3, sT4, 1024 * gi), tag=('x', cb))
            for s in pre[:npre]: g(s)
            pre = pre[npre:]
        g('s_add_u32 s%d, s%d, 128' % (sT4, sT4))
    assert not pre
    st(2)
    g('s_cmp_lt_u32 s%d, 2' % sW)
    g('s_cbranch_scc0 L1_w23')
    g.fence()
    srd(g, S1, 10, 448 * 8192)
    srd(g, SKV, 6, 8 * 2048 * 512)
    g('s_mov_b32 s%d, %d' % (sST1, 32 * 8192))
    g('s_lshl_b32 s%d, s%d, 20' % (sOKV, sKVH))
    g('s_add_u32 s%d, s%d, %d' % (sOKV, sOKV, 1536 * 512))
    g('s_lshl_b32 s%d, s%d, 9' % (sO1, sH))
    g('s_lshl_b32 s%d, s%d, 4' % (sT2, sW))
    g('v_add_u32 v%d, s%d, v%d' % (t0, sT2, HH))
    for par in range(2):
        g('v_add_u32 v%d, %d, v%d' % (t1, 2 * par, HH))
        g('v_lshlrev_b32 v%d, 2, v%d' % (t1, t1))
        g('v_xor_b32 v%d, v%d, v%d' % (t1, t1, N))
        g('v_lshlrev_b32 v%d, 4, v%d' % (t1, t1))
        g('v_lshl_add_u32 v%d, v%d, 13, v%d' % (t1, t0, t1))
        for i in range(par, 8, 2):
            g('v_add_u32 v%d, %d, v%d' % (DV1[i], 2 * i * 8192 - 1024 * (i & 3), t1))
    g('v_xor_b32 v%d, v%d, v%d' % (t2, HH, N))
    g('v_lshlrev_b32 v%d, 9, v%d' % (t0, t0))
    for i in range(8):
        g('v_xor_b32 v%d, %d, v%d' % (t1, 2 * i, t2))
        g('v_lshl_add_u32 v%d, v%d, 4, v%d' % (t1, t1, t0))
        g('v_add_u32 v%d, %d, v%d' % (DV2[i], 1024 * i - 1024 * (i & 3), t1))
    g('s_mul_i32 s%d, s%d, 28' % (sT0, sRT))
    g('s_mul_i32 s%d, s%d, 14' % (sT1, sW))
    g('s_add_u32 s%d, s%d, s%d' % (sT0, sT0, sT1))
    g('s_lshl_b32 s%d, s%d, 13' % (sT0, sT0))
    g('s_add_u32 s%d, s%d, s%d' % (sIDX, sT0, sO1))
    g('s_mov_b32 s%d, 8192' % sT4)
    g('s_branch L1_wj')
    g.label('L1_w23')
    g.fence()
    g('s_cmp_eq_u32 s%d, 2' % sW)
    g('s_cselect_b32 s%d, s16, s18' % S1)
    g('s_cselect_b32 s%d, s17, s19' % (S1 + 1))
    g('s_cselect_b32 s%d, 0, 8' % sT0)
    g('s_and_b32 s%d, s%d, 0xffff' % (S1 + 1, S1 + 1))
    g('s_mov_b32 s%d, 0x%x' % (S1 + 2, 448 * 3584))
    g('s_mov_b32 s%d, 0x20000' % (S1 + 3))
    srd(g, SKV, 8, 8 * 2048 * 512)
    g('s_mov_b32 s%d, %d' % (sST1, 32 * 3584))
    g('s_lshl_b32 s%d, s%d, 20' % (sOKV, sKVH))
    g('s_add_u32 s%d, s%d, %d' % (sOKV, sOKV, 1536 * 512 - 16384))
    g('s_mul_i32 s%d, s%d, 224' % (sO1, sH))
    g('s_and_b32 s%d, s%d, 1' % (sT2, sW))
    g('s_lshl_b32 s%d, s%d, 4' % (sT2, sT2))
    g('s_mov_b32 s%d, 4682' % sT4)
    g('v_mov_b32 v%d, 0x%x' % (t4, OOB))
    g('v_subrev_u32 v%d, s%d, v%d' % (t3, sT0, L))
    for i in range(8):
        g('v_add_u32 v%d, %d, v%d' % (t0, 64 * i, t3))
        g('v_cmp_gt_u32 vcc, 448, v%d' % t0)
        g('v_mul_u32_u24 v%d, s%d, v%d' % (t1, sT4, t0))
        g('v_lshrrev_b32 v%d, 16, v%d' % (t1, t1))
        g('v_mul_u32_u24 v%d, %d, v%d' % (t1, 3584 - 224, t1))
        g('v_lshl_add_u32 v%d, v%d, 4, v%d' % (t1, t0, t1))
        g('v_subrev_u32 v%d, %d, v%d' % (t1, 1024 * (i & 3), t1))
        g('v_cndmask_b32 v%d, v%d, v%d, vcc' % (DV1[i], t4, t1))
    g('v_add_u32 v%d, s%d, v%d' % (t0, sT2, HH))
    for par in range(2):
        g('v_add_u32 v%d, %d, v%d' % (t1, 2 * par, HH))
        g('v_lshlrev_b32 v%d, 2, v%d' % (t1, t1))
        g('v_xor_b32 v%d, v%d, v%d' % (t1, t1, N))
        g('v_lshlrev_b32 v%d, 4, v%d' % (t1, t1))
        g('v_lshl_add_u32 v%d, v%d, 9, v%d' % (t1, t0, t1))
        for i in range(par, 8, 2):
            g('v_add_u32 v%d, %d, v%d' % (DV2[i], 1024 * i - 1024 * (i & 3), t1))
    g('s_lshl_b32 s%d, s%d, 1' % (sT0, sRT))
    g('s_and_b32 s%d, s%d, 1' % (sT1, sH))
    g('s_add_u32 s%d, s%d, s%d' % (sT0, sT0, sT1))
    g('s_mul_i32 s%d, s%d, %d' % (sT0, sT0, 14 * 3584))
    g('s_mul_i32 s%d, s%d, 448' % (sT1, sKVH))
    g('s_and_b32 s%d, s%d, 0xffffff80' % (sT1, sT1))
    g('s_add_u32 s%d, s%d, s%d' % (sIDX, sT0, sT1))
    g('s_mov_b32 s%d, 3584' % sT4)
    g.label('L1_wj')
    g.fence()
    g('s_nop 1')

    def dma_items(stage):
        if stage < 14: dv, s, so, adv = DV1, S1, sO1, 's_add_u32 s%d, s%d, s%d' % (sO1, sO1, sST1)
        elif stage < 18: dv, s, so, adv = DV3, SWD, sOWD, ('s_add_u32 s%d, s%d, 256' % (sOWD, sOWD) if stage != 16 else 's_add_u32 s%d, s%d, s%d' % (sOWD, sOWD, sAD3))
        elif stage < 35: dv, s, so, adv = DV2, SKV, sOKV, 's_add_u32 s%d, s%d, 0x4000' % (sOKV, sOKV)
        else: dv, s, so, adv = DV3, SWO, sOWO, ['s_add_u32 s%d, s%d, 128' % (sOWO, sOWO), 's_cmp_eq_u32 s%d, s%d' % (sOWO, sWOE),
                                                's_cselect_b32 s%d, 896, 0' % sT2, 's_sub_u32 s%d, s%d, s%d' % (sOWO, sOWO, sT2)]
        items = []
        for i in range(8):
            def f(i=i):
                g('buffer_load_dwordx4 v%d, s[%d:%d], s%d offen offset:%d lds' % (dv[i], s, s + 3, so, 1024 * (i & 3)), tag=('st', stage))
                if i == 7:
                    for a_ in ([adv] if isinstance(adv, str) else adv): g(a_)
            def m(i=i):
                g('s_add_u32 m0, s%d, %d' % (sQB, (stage % 5) * 32768 + 1024 * i))
            items.append((m if i % 4 == 0 else None, f))
        return items
    def dma_now(stage):
        for m, f in dma_items(stage):
            if m: m()
            f()
    st(2)
    dma_now(0)
    st(2)
    srd(g, SWO, 12, 4096 * 896)
    srd(g, SWD, 20, 1792 * 896)
    srd(g, SWS, 26, WS_SIZE)
    srd(g, SDBG, 24, 256)
    srd(g, SOUT, 22, 2048 * 896)
    g('s_or_b32 s%d, s2, s%d' % (sT0, sW))
    g('s_cmp_lg_u32 s%d, 0' % sT0)
    g('s_cbranch_scc1 L1_non')
    g.raw('    s_memrealtime s[74:75]')
    g.raw('    v_mov_b32 v%d, 0' % t1)
    g.raw('    s_waitcnt lgkmcnt(0)')
    g.raw('    s_or_b32 s74, s74, 1')
    g.raw('    v_mov_b32 v%d, s74' % t0)
    g.raw('    buffer_store_dword v%d, v%d, s[%d:%d], 0 offen sc1' % (t0, t1, SDBG, SDBG + 3))
    g.label('L1_non')
    g.vm.append(('non', set(), True))
    g.vm.pop()
    g('s_mov_b32 s%d, 0x3f803f80' % sONE)
    g('s_mov_b32 s%d, 0xffff0000' % sMASK)
    g('s_mov_b32 s%d, %s' % (sTHR, f2h(TTHR)))
    g('s_lshl_b32 s%d, s%d, 6' % (sSP, sH))
    g('s_add_u32 s%d, s%d, s%d' % (sSP, sSP, sT3))
    g('s_mul_i32 s%d, s%d, 28672' % (sSP, sSP))
    if SP_BASE: g('s_add_u32 s%d, s%d, 0x%x' % (sSP, sSP, SP_BASE))
    g('s_add_u32 s%d, s%d, 28672' % (sSPE, sSP))
    g('s_add_u32 s%d, s%d, 0x%x' % (sYP, sSP, YP_OFF))
    g('s_add_u32 s%d, s%d, 896' % (sWOE, sOWO))
    g('s_mul_i32 s%d, s%d, 37' % (sT0, sH))
    g('s_lshr_b32 s%d, s%d, 8' % (sT0, sT0))
    g('s_mul_i32 s%d, s%d, 7' % (sT0, sT0))
    g('s_sub_u32 s%d, s%d, s%d' % (sT0, sH, sT0))
    g('s_lshl_b32 s%d, s%d, 7' % (sT1, sT0))
    g('s_add_u32 s%d, s%d, s%d' % (sOWO, sOWO, sT1))
    g('s_lshl_b32 s%d, s%d, 12' % (sT1, sT0))
    g('s_add_u32 s%d, s%d, s%d' % (sSP, sSP, sT1))
    g('s_mul_i32 s%d, s%d, %d' % (sOWD, sH, 112 * 896))
    g('s_and_b32 s%d, s%d, 1' % (sT1, sW))
    g('s_mul_i32 s%d, s%d, %d' % (sT1, sT1, 64 * 896))
    g('s_add_u32 s%d, s%d, s%d' % (sOWD, sOWD, sT1))
    g('s_lshr_b32 s%d, s%d, 1' % (sT1, sW))
    g('s_lshl_b32 s%d, s%d, 29' % (sAD3, sT1))
    g('s_add_u32 s%d, s%d, 256' % (sAD3, sAD3))
    g('s_lshl_b32 s%d, s%d, 7' % (sT1, sT1))
    g('s_add_u32 s%d, s%d, s%d' % (sOWD, sOWD, sT1))
    g('s_lshl_b32 s%d, s%d, 4' % (sFP, sT3))
    g('s_add_u32 s%d, s%d, s%d' % (sFP, sFP, sH))
    g('s_mul_i32 s%d, s%d, %d' % (sFP, sFP, FST))
    g('s_add_u32 s%d, s%d, 0x%x' % (sFP, sFP, FL_BASE))
    g('s_lshr_b32 s%d, s2, 3' % sI)
    g('s_sub_i32 s%d, s%d, 4' % (sCT, sI))
    g('s_max_i32 s%d, s%d, 0' % (sCT, sCT))
    g('s_mul_i32 s%d, s%d, 4682' % (sT0, sCT))
    g('s_lshr_b32 s%d, s%d, 16' % (sT0, sT0))
    g('s_mul_i32 s%d, s%d, 14' % (sT1, sT0))
    g('s_sub_u32 s%d, s%d, s%d' % (sCT, sCT, sT1))
    g('s_and_b32 s%d, s%d, 1' % (sT0, sT0))
    g('s_and_b32 s%d, s2, 7' % sT1)
    g('s_lshl_b32 s%d, s%d, 1' % (sT1, sT1))
    g('s_add_u32 s%d, s%d, s%d' % (sT0, sT0, sT1))
    g('s_lshl_b32 s%d, s%d, 2' % (sRO, sT0))
    g('s_add_u32 s%d, s%d, s%d' % (sRO, sRO, sW))
    g('s_mul_i32 s%d, s%d, %d' % (sFC, sRO, 16 * FST))
    g('s_add_u32 s%d, s%d, 0x%x' % (sFC, sFC, FL_BASE))
    g('s_mul_i32 s%d, s%d, 14' % (sPB, sRO))
    g('s_add_u32 s%d, s%d, s%d' % (sPB, sPB, sCT))
    g('s_lshl_b32 s%d, s%d, 11' % (sPB, sPB))
    if SP_BASE: g('s_add_u32 s%d, s%d, 0x%x' % (sPB, sPB, SP_BASE))
    g('s_mov_b32 s%d, 0xffff' % sPEND)
    g('s_mov_b32 s%d, 0' % sSPIN)
    g('s_mul_i32 s%d, s%d, %d' % (sXO, sRO, 32 * 896))
    g('s_lshl_b32 s%d, s%d, 6' % (sT0, sCT))
    g('s_add_u32 s%d, s%d, s%d' % (sXO, sXO, sT0))
    g('s_add_u32 s%d, s%d, 0x%x' % (sYB, sPB, YP_OFF))
    st(2)
    A0, A1, A2, A3 = T[4:8]
    def xread(cb):
        g.wait_tag(('x', cb), False)
        o = (cb // 2) * 32768 + (cb & 1) * 4096
        for tt in range(4):
            g('ds_read_b128 %s, v%d offset:%d' % (vr(X + 16 * cb + 4 * tt, 4), XR[o >> 16][tt], o & 0xffff))
    def stats(cb):
        for d in range(16):
            r = X + 16 * cb + d
            g('v_dot2c_f32_bf16 v%d, s%d, v%d' % ((A0, A1)[d & 1], sONE, r))
            g('v_dot2c_f32_bf16 v%d, v%d, v%d' % ((A2, A3)[d & 1], r, r))
    xread(0)
    for cb in range(7):
        if cb < 6: xread(cb + 1)
        if cb == 6:
            g.wait(lg=0)
            st(2)
            dma_now(1)
        stats(cb)
    g('v_add_f32 v%d, v%d, v%d' % (A0, A0, A1))
    g('v_add_f32 v%d, v%d, v%d' % (A2, A2, A3))
    g('v_mov_b32 v%d, v%d' % (A1, A0))
    g('v_mov_b32 v%d, v%d' % (A3, A2))
    g('v_permlane32_swap_b32 v%d, v%d' % (A0, A1))
    g('v_permlane32_swap_b32 v%d, v%d' % (A2, A3))
    g('v_add_f32 v%d, v%d, v%d' % (A0, A0, A1))
    g('v_add_f32 v%d, v%d, v%d' % (A2, A2, A3))
    g('v_mul_f32 v%d, %s, v%d' % (A0, f2h(1.0 / 448), A0))
    g('v_mul_f32 v%d, %s, v%d' % (A2, f2h(1.0 / 448), A2))
    g('v_fma_f32 v%d, -v%d, v%d, v%d' % (A2, A0, A0, A2))
    g('v_max_f32 v%d, 0, v%d' % (A2, A2))
    g('v_add_f32 v%d, %s, v%d' % (A2, f2h(1e-5), A2))
    g('v_rsq_f32 v%d, v%d' % (A2, A2))
    g('v_mul_f32 v%d, %s, v%d' % (VA, f2h(CS), A2))
    g('v_mul_f32 v%d, -v%d, v%d' % (VBB, A0, VA))

    def norm_items(t):
        its = []
        for d in range(4):
            r = X + 4 * t + d
            a, b = T[2 * (d & 1)], T[2 * (d & 1) + 1]
            its += ['v_lshlrev_b32 v%d, 16, v%d' % (a, r),
                    'v_and_b32 v%d, s%d, v%d' % (b, sMASK, r),
                    'v_fma_f32 v%d, v%d, v%d, v%d' % (a, a, VA, VBB),
                    'v_fma_f32 v%d, v%d, v%d, v%d' % (b, b, VA, VBB),
                    'v_cvt_pk_bf16_f32 v%d, v%d, v%d' % (r, a, b)]
        return its
    g.wait_tag(('st', 0), False)
    g('s_barrier')
    st(3)
    if OPT['tw1']:
        g('v_min_u32 v%d, 55, v%d' % (t0, L))
        g('v_lshrrev_b32 v%d, 2, v%d' % (t1, t0))
        g('v_mul_u32_u24 v%d, s%d, v%d' % (t1, sT4, t1))
        g('v_and_b32 v%d, 3, v%d' % (t0, t0))
        g('v_lshl_add_u32 v%d, v%d, 7, v%d' % (t0, t0, t1))
        g('buffer_load_dword v26, v%d, s[%d:%d], s%d offen' % (t0, S1, S1 + 3, sIDX))

    M = []
    def tr(base, off): return [('ds_read_b64_tr_b16', 0, base, off[0]), ('ds_read_b64_tr_b16', 2, base, off[1])]
    idx = {}
    for s in range(14):
        bs, so = slot_off(s)
        for tt in range(2):
            t = 2 * s + tt
            idx[('p1', t)] = len(M)
            mq = []; mg = []
            for n in range(8):
                o = so + tt * 8192 + (n >> 2) * 256
                mq.append((s, tr(VB[bs][n & 3], (o, o + 2048)),
                          lambda af, n=n, t=t: MF(ar(16 * n, 16), vr(af, 4), vr(X + 4 * t, 4), ar(16 * n, 16) if t else '0')))
            for n in range(7):
                o = so + 16384 + 16 * tt * 224 + 32 * n
                mg.append((s, tr(VG[bs], (o, o + 4 * 224)),
                          lambda af, n=n, t=t: MF(ar(128 + 16 * n, 16), vr(af, 4), vr(X + 4 * t, 4), ar(128 + 16 * n, 16) if t else '0')))
            M += (mg + mq) if t == 27 else (mq + mg)
    kyp = len(M); idx['yp'] = kyp
    order = [(ct, ks) for ks in range(7) for ct in range(3)] + [(ct, ks) for ct in range(3, 14) for ks in range(7)]
    yfirst = {}; ylast = {}; hfirst = {}
    for ct, ks in order:
        s = 14 + ct // 4; bs, so = slot_off(s)
        o = so + ((ct >> 1) & 1) * 16384 + ks * 2048
        acc = YB[ct & 3]
        yfirst.setdefault(ct, len(M)); ylast[ct] = len(M); hfirst.setdefault(ks, len(M))
        M.append((s, tr(OB[bs][ct & 1], (o, o + 512)),
                  lambda af, acc=acc, ks=ks: MF(vr(acc, 16), vr(af, 4), vr(HF[ks], 4), vr(acc, 16) if ks else '0')))
    A0S = 18
    def add_qk(j):
        s = A0S + j; bs, so = slot_off(s); S = SB[j & 1]
        idx[('qk', j)] = len(M)
        for t in range(16):
            c = vr(S, 16) if t else ('0' if j < 2 else vr(NEGM, 16))
            M.append((s, [('ds_read_b128', 0, KB[bs][t & 7], so + (t >> 3) * 256)],
                      lambda af, t=t, S=S, c=c: MF(vr(S, 16), vr(af, 4), vr(Q + 4 * t, 4), c)))
    def add_pv(j):
        s = A0S + 1 + j; bs, so = slot_off(s)
        idx[('pv', j)] = len(M)
        for tt in range(2):
            for n in range(8):
                o = so + 16384 + tt * 8192 + (n >> 2) * 256
                c = '0' if (j == 0 and tt == 0) else ar(16 * n, 16)
                M.append((s, tr(VB[bs][n & 3], (o, o + 2048)),
                          lambda af, n=n, tt=tt, c=c: MF(ar(16 * n, 16), vr(af, 4), vr(PB[tt], 4), c)))
    add_qk(0)
    for j in range(15):
        add_qk(j + 1); add_pv(j)
    add_pv(15)
    for u in range(7):
        s = 35 + u; bs, so = slot_off(s)
        idx[('op', u)] = len(M)
        for t in range(16):
            for n in range(2):
                o = so + t * 2048
                acc = SACC[u & 1] + 16 * n
                M.append((s, tr(OB[bs][n], (o, o + 512)),
                          lambda af, acc=acc, t=t: MF(vr(acc, 16), vr(af, 4), vr(OF + 4 * t, 4), vr(acc, 16) if t else '0')))
    kt = len(M); o0 = idx[('op', 0)]
    def yq(i): return 128 + (64 + 4 * i) % 128
    for i in range(32):
        M.append((41, [], lambda af, i=i: MF(vr(YACC, 16), vr(IA[i & 1], 4), ar(yq(i), 4), vr(YACC, 16) if i else '0')))
    for i in range(32):
        M.append((41, [], lambda af, i=i: MF(vr(SA, 16), vr(IA[i & 1], 4), ar(4 * i, 4), vr(SA, 16) if i else '0')))
    NM = len(M)
    gaps = [[] for _ in range(NM + 1)]
    first = {}; last = {}
    for k, m in enumerate(M):
        first.setdefault(m[0], k); last[m[0]] = k
    bar_at = {}
    for s in range(NST - 1):
        bar_at[last[s] + 1 - OPT['barpos']] = s
    for t in range(27):
        k0 = idx[('p1', t)]
        spread(gaps, norm_items(t + 1), k0, k0 + 13)
    TA_, TB_, TD_ = 24, 25, 26
    def touch(n, srdn, so, flags=''):
        return ['v_min_u32 v%d, %d, v%d' % (TA_, (n - 1) * 16, VL16),
                'v_lshl_add_u32 v%d, v%d, 3, v%d' % (TA_, TA_, TB_),
                ('raw', 'buffer_load_dword v%d, v%d, s[%d:%d], %s offen%s' % (TD_, TA_, srdn, srdn + 3, so, flags))]
    if OPT['twd'] >= 0:
        gaps[idx[('p1', OPT['twd'])] + 3] += ['s_lshl_b32 s%d, s%d, 2' % (sT0, sRT), 's_add_u32 s%d, s%d, s%d' % (sT0, sT0, sW), 's_mul_i32 s%d, s%d, 1568' % (sT0, sT0),
                     's_mul_i32 s%d, s%d, %d' % (sT1, sH, 112 * 896), 's_add_u32 s%d, s%d, s%d' % (sT0, sT0, sT1),
                     'v_mov_b32 v%d, 0' % TB_] + touch(13, SWD, 's%d' % sT0)
    if OPT['tkv'] >= 0:
        gaps[idx[('p1', OPT['tkv'])] + 3] += ['s_lshl_b32 s%d, s%d, 1' % (sT0, sRT), 's_and_b32 s%d, s%d, 1' % (sT1, sH), 's_add_u32 s%d, s%d, s%d' % (sT0, sT0, sT1),
                     's_lshl_b32 s%d, s%d, 1' % (sT0, sT0), 's_and_b32 s%d, s%d, 1' % (sT1, sW), 's_add_u32 s%d, s%d, s%d' % (sT0, sT0, sT1),
                     's_lshl_b32 s%d, s%d, 12' % (sT0, sT0), 's_lshl_b32 s%d, s%d, 20' % (sT1, sKVH), 's_add_u32 s%d, s%d, s%d' % (sT0, sT0, sT1),
                     'v_mov_b32 v%d, 0x%x' % (TB_, 1536 * 512)] + touch(32, SKV, 's%d' % sT0)
    if OPT['two'] >= 0:
        gaps[idx[('qk', OPT['two'])] + 3] += ['s_lshl_b32 s%d, s%d, 2' % (sT0, sRT), 's_add_u32 s%d, s%d, s%d' % (sT0, sT0, sW), 's_mul_i32 s%d, s%d, 3584' % (sT0, sT0),
                     's_mul_i32 s%d, s%d, %d' % (sT1, sH, 256 * 896), 's_add_u32 s%d, s%d, s%d' % (sT0, sT0, sT1),
                     'v_mov_b32 v%d, 0' % TB_] + touch(28, SWO, 's%d' % sT0)
    def conv_items(dst, t, tmp):
        its = []
        base = 16 * (t >> 1) + 8 * (t & 1)
        for d in range(4):
            a, b = tmp[2 * (d & 1)], tmp[2 * (d & 1) + 1]
            its += ['v_accvgpr_read_b32 v%d, a%d' % (a, base + 2 * d),
                    'v_accvgpr_read_b32 v%d, a%d' % (b, base + 2 * d + 1),
                    'v_cvt_pk_bf16_f32 v%d, v%d, v%d' % (dst + 4 * t + d, a, b)]
        return its
    def h_items(n):
        its = []
        base = 128 + 16 * n
        for d in range(4):
            a, b, c, e = T[4 * (d & 1):4 * (d & 1) + 4]
            its += ['v_accvgpr_read_b32 v%d, a%d' % (a, base + 2 * d), 'v_accvgpr_read_b32 v%d, a%d' % (b, base + 8 + 2 * d),
                    'v_accvgpr_read_b32 v%d, a%d' % (c, base + 2 * d + 1), 'v_accvgpr_read_b32 v%d, a%d' % (e, base + 8 + 2 * d + 1),
                    'v_mul_f32 v%d, v%d, v%d' % (a, a, b), 'v_mul_f32 v%d, v%d, v%d' % (c, c, e),
                    'v_cvt_pk_bf16_f32 v%d, v%d, v%d' % (HF[n] + d, a, c)]
        return its
    direct = [int(x) for x in str(OPT['direct']).split(',')]
    parked = [ct for ct in range(14) if ct not in direct]
    assert len(parked) <= 8
    def yst(src, ct, q):
        return ('seq', ['s_add_u32 s%d, s%d, %d' % (sT0, sYP, (ct >> 1) * 4096),
                ('y', 'buffer_store_dwordx4 %s, v%d, s[%d:%d], s%d offen offset:%d%s' % (src, VL16, SWS, SWS + 3, sT0, (ct & 1) * 2048 + q * 1024, STF))])
    def yepi(ct):
        acc = YB[ct & 3]; its = []
        for d in range(8):
            if ct in direct:
                its.append('v_cvt_pk_bf16_f32 v%d, v%d, v%d' % (acc + d, acc + 2 * d, acc + 2 * d + 1))
                if d & 3 == 3: its.append(yst(vr(acc + d - 3, 4), ct, d >> 2))
            else:
                its += ['v_cvt_pk_bf16_f32 v%d, v%d, v%d' % (T[4 + (d & 3)], acc + 2 * d, acc + 2 * d + 1)]
                if d & 1: its += ['v_accvgpr_write_b32 a%d, v%d' % (128 + 8 * parked.index(ct) + d - 1, T[4 + ((d - 1) & 3)]),
                                  'v_accvgpr_write_b32 a%d, v%d' % (128 + 8 * parked.index(ct) + d, T[4 + (d & 3)])]
        return its
    k27 = idx[('p1', 27)]; kq0 = idx[('qk', 0)]
    qh = [(k27 + n + 2, hfirst[n], x) for n in range(7) for x in h_items(n)]
    def ydead(ct): return yfirst[ct + 4] if ct + 4 < 14 else (kq0 if (ct & 3) == 0 else idx[('qk', 1)] if (ct & 3) == 1 else idx[('qk', 1)] + 5)
    qe = [(ylast[ct] + 2, ydead(ct), x) for ct in range(14) for x in yepi(ct)]
    qq = [(kyp + 2, kq0 + t, x) for t in range(16) for x in conv_items(Q, t, T[0:4])]
    k = k27
    while qh or qe or qq:
        n = OPT['vq'] + (1 if qh else 0)
        while n > 0 or (qh and qh[0][1] <= k + 1) or (qe and qe[0][1] <= k + 1) or (qq and qq[0][1] <= k + 1):
            q_ = None
            if qh: q_ = qh if qh[0][0] <= k else None
            elif qq and qq[0][1] <= k + 2: q_ = qq
            elif qe and qe[0][0] <= k: q_ = qe
            elif qq: q_ = qq
            if not q_: break
            e, dl, x = q_.pop(0)
            assert e <= k < dl, (e, k, dl, x)
            gaps[k].append(x); n -= 1
        k += 1
    sys.stderr.write('conv sched ends at qk0%+d\n' % (k - kq0))
    kk = kq0 + 12
    for ct in parked:
        for q in range(2):
            gaps[kk].append(yst(ar(128 + 8 * parked.index(ct) + 4 * q, 4), ct, q)); kk += OPT['ypace']
    def exp_items(S, lo, P, sub=False):
        its = []
        for i in range(lo, lo + 8, 2):
            if sub:
                its += ['v_sub_f32 v%d, v%d, v%d' % (S + i, S + i, VMX), 'v_sub_f32 v%d, v%d, v%d' % (S + i + 1, S + i + 1, VMX)]
            its += ['v_exp_f32 v%d, v%d' % (S + i, S + i), 'v_exp_f32 v%d, v%d' % (S + i + 1, S + i + 1),
                    'v_add_f32 v%d, v%d, v%d' % (VL, VL, S + i), 'v_add_f32 v%d, v%d, v%d' % (VL, VL, S + i + 1),
                    'v_cvt_pk_bf16_f32 v%d, v%d, v%d' % (P + (i - lo) // 2, S + i, S + i + 1)]
        return its
    def max_items(S, dst):
        its = ['v_max3_f32 v%d, v%d, v%d, v%d' % (dst, S, S + 1, S + 2)]
        for i in range(3, 15, 2):
            its.append('v_max3_f32 v%d, v%d, v%d, v%d' % (dst, dst, S + i, S + i + 1))
        its.append('v_max_f32 v%d, v%d, v%d' % (dst, dst, S + 15))
        return its
    assert k <= idx[('qk', 1)] + 2
    vccbusy = set()
    for j in range(16):
        S = SB[j & 1]
        kb = idx[('pv', j)]
        if j == 0:
            ka = idx[('qk', 1)]
            its = max_items(S, VMX) + ['v_mov_b32 v%d, v%d' % (T[4], VMX), 'v_permlane32_swap_b32 v%d, v%d' % (VMX, T[4]),
                                       'v_max_f32 v%d, v%d, v%d' % (VMX, VMX, T[4])]
            spread(gaps, its, ka + 2, ka + 5)
            spread(gaps, exp_items(S, 0, PB[0], True), ka + 6, ka + 14)
            spread(gaps, exp_items(S, 8, PB[1], True), ka + 15, kb + 6)
            its = ['v_sub_f32 v%d, v%d, v%d' % (SB[1] + i, SB[1] + i, VMX) for i in range(16)]
            its += ['v_sub_f32 v%d, 0, v%d' % (NEGM + i, VMX) for i in range(16)]
            spread(gaps, its, kb + 3, kb + 11)
            spread(gaps, max_items(SB[1], T[5]), kb + 12, kb + 14)
        elif j < 15:
            ka = idx[('qk', j + 1)]
            spread(gaps, exp_items(S, 0, PB[0]), ka, ka + 9)
            spread(gaps, exp_items(S, 8, PB[1]), ka + 10, kb + 5)
            spread(gaps, max_items(SB[(j + 1) & 1], T[5]), kb + 6, kb + 14)
        else:
            gaps[kb - 1] += exp_items(S, 0, PB[0])
            spread(gaps, exp_items(S, 8, PB[1]), kb, kb + 6)
        if j < 15:
            gaps[kb + 14].append('v_cmp_lt_f32 vcc, s%d, v%d' % (sTHR, T[5]))
            gaps[kb + 15].insert(0, ('rare', j + 1))
            vccbusy.add(kb + 14)
    def vok(k): return k + 1 if k in vccbusy else k
    k5 = idx[('qk', 3)]
    its = ['v_mov_b32 v%d, 0' % VPOLL, 'buffer_load_dword v%d, v%d, s[%d:%d], 0 offen sc1' % (VNON, VPOLL, SDBG, SDBG + 3),
           'v_lshrrev_b32 v%d, 4, v%d' % (T[6], VL16),
           'v_cmp_gt_u32 vcc, %d, v%d' % (OPT.get('fw', 32), T[6]),
           'v_mov_b32 v%d, 0x%x' % (T[7], OOB),
           'v_lshlrev_b32 v%d, 2, v%d' % (T[8], T[6]),
           'v_and_b32 v%d, 15, v%d' % (VFL, T[6]),
           'v_cndmask_b32 v%d, v%d, v%d, vcc' % (VFO, T[7], T[8]),
           'v_mul_u32_u24 v%d, %d, v%d' % (VFL, FST, VFL),
           'v_and_b32 v%d, 31, v%d' % (T[7], T[6]), 'v_mul_u32_u24 v%d, 896, v%d' % (T[7], T[7]),
           'v_and_b32 v%d, 32, v%d' % (T[8], T[6]), 'v_add_u32 v%d, v%d, v%d' % (VXO, T[7], T[8])]
    spread(gaps, its, k5, k5 + 12)
    kp = vok(kk - OPT['ypace'] + OPT['ypd'])
    assert kp > k5 + 40
    gaps[kp] += [('nonce',), ('waittag', 'y'), 'buffer_store_dword v%d, v%d, s[%d:%d], s%d offen sc1' % (VNON, VFO, SWS, SWS + 3, sFP)]
    gaps[kp + OPT['yfl']] += ['buffer_load_dword v%d, v%d, s[%d:%d], s%d offen sc1' % (VPOLL, VFL, SWS, SWS + 3, sFC)]
    kq = vok(kp + OPT['yfl'] + OPT['ychk'])
    sys.stderr.write('ypub at iter %.1f, ychk at iter %.1f\n' % ((kp - kq0 - 16) / 32, (kq - kq0 - 16) / 32))
    gaps[kq] += [('poll', 'h', 0)]
    def pl(dst, so, off): return 'buffer_load_dwordx4 %s, v%d, s[%d:%d], s%d offen offset:%d sc1' % (ar(dst, 4), VL16, SWS, SWS + 3, so, off)
    lo, hi = kq + 1, o0 + OPT['yend']
    for i in range(32):
        gaps[lo + i * (hi - lo) // 32] += [pl(yq(i), sYB, (i & 1) * 1024)] + (['s_add_u32 s%d, s%d, %d' % (sYB, sYB, HS)] if i & 1 else [])
    g0 = idx[('pv', 15)] + 10
    its = [x for t in range(16) for x in conv_items(OF, t, T[0:4])]
    quota(gaps, its[:48], g0, 8)
    quota(gaps, its[48:], g0 + 6, 6)
    gaps[o0 + 26] += ['v_mov_b32 v%d, v%d' % (T[4], VL), 'v_mov_b32 v%d, v%d' % (T[5], VL)]
    gaps[o0 + 27] += ['v_permlane32_swap_b32 v%d, v%d' % (T[4], T[5])]
    gaps[o0 + 28] += ['v_add_f32 v%d, v%d, v%d' % (T[4], T[4], T[5])]
    gaps[o0 + 29] += ['v_rcp_f32 v%d, v%d' % (VRI, T[4])]
    its = ['s_lshr_b32 s%d, s%d, 1' % (sT1, sCT), 's_add_u32 s%d, s%d, 21' % (sT1, sT1),
           'v_bfe_u32 v%d, v%d, 4, 4' % (T[8], VL16),
           'v_sub_u32 v%d, s%d, v%d' % (VSTEP, sT1, T[8]),
           'v_mul_u32_u24 v%d, 37, v%d' % (VNEED, VSTEP),
           'v_lshrrev_b32 v%d, 8, v%d' % (VNEED, VNEED),
           'v_mul_u32_u24 v%d, 7, v%d' % (VNEED, VNEED),
           'v_sub_u32 v%d, v%d, v%d' % (VSTEP, VSTEP, VNEED),
           'v_add3_u32 v%d, v%d, v%d, 1' % (VNEED, VSTEP, VNON),
           's_add_u32 s%d, s%d, 128' % (sFC, sFC), 's_add_u32 s%d, s%d, 128' % (sFP, sFP)]
    spread(gaps, its, o0 + 48, o0 + 60)
    its = ['v_lshrrev_b32 v%d, 4, v%d' % (T[6], VL16),
           'v_lshrrev_b32 v%d, 3, v%d' % (T[7], T[6]),
           'v_xor_b32 v%d, v%d, v%d' % (T[7], T[7], T[6]),
           'v_and_b32 v%d, 4, v%d' % (T[7], T[7]),
           'v_lshlrev_b32 v%d, 1, v%d' % (T[7], T[7]),
           'v_bfe_u32 v%d, v%d, 3, 2' % (T[8], T[6]),
           'v_lshl_or_b32 v%d, v%d, 1, v%d' % (T[7], T[8], T[7]),
           'v_bfe_u32 v%d, v%d, 1, 1' % (T[8], T[6]),
           'v_or_b32 v%d, v%d, v%d' % (T[7], T[7], T[8]),
           'v_and_b32 v%d, 1, v%d' % (T[8], T[6]),
           'v_lshlrev_b32 v%d, 4, v%d' % (T[8], T[8]),
           'v_mov_b32 v%d, 0x3f80' % T[6],
           'v_lshlrev_b32 v%d, v%d, v%d' % (T[8], T[8], T[6])]
    for d in range(8):
        its += [('seq', ['v_cmp_eq_u32 vcc, %d, v%d' % (d, T[7]), 'v_cndmask_b32 v%d, 0, v%d, vcc' % (IA[0] + d, T[8])])]
    spread(gaps, its, o0 + 80, o0 + 94)
    def epi_items(u):
        its = []
        for n in range(2):
            acc = SACC[u & 1] + 16 * n
            for q in range(2):
                for d in range(4):
                    i = acc + 8 * q + 2 * d
                    its += ['v_mul_f32 v%d, v%d, v%d' % (i, i, VRI), 'v_mul_f32 v%d, v%d, v%d' % (i + 1, i + 1, VRI),
                            'v_cvt_pk_bf16_f32 v%d, v%d, v%d' % (ST + 8 * n + 4 * q + d, i, i + 1)]
                its.append(('tag', ('s', u), 'buffer_store_dwordx4 %s, v%d, s[%d:%d], s%d offen offset:%d%s' % (vr(ST + 8 * n + 4 * q, 4), VL16, SWS, SWS + 3, sSP, n * 2048 + q * 1024, STF)))
        if u < 6:
            its += [('seq', ['s_add_u32 s%d, s%d, 4096' % (sSP, sSP), 's_cmp_eq_u32 s%d, s%d' % (sSP, sSPE),
                    's_cselect_b32 s%d, 28672, 0' % sT0, 's_sub_u32 s%d, s%d, s%d' % (sSP, sSP, sT0)])]
        return its
    gaps[kt - 1].append(('noty',))
    spub = 'buffer_store_dword v%d, v%d, s[%d:%d], s%d offen sc1' % (VNON, VFO, SWS, SWS + 3, sFP)
    def sfl(u): return 'buffer_load_dword v%d, v%d, s[%d:%d], s%d offen sc1' % (VP2[u & 1], VFL, SWS, SWS + 3, sFC)
    LS = {k: [o0 + int(x) for x in str(OPT[k]).split(',')] for k in ('pub', 'fl', 'chk')}
    npub_pre = 0
    for u in range(7):
        k0 = o0 + 32 * (u + 1)
        spread(gaps, epi_items(u), k0 + (1 if u < 6 else 0), k0 + (OPT['epw'] if u < 6 else 6))
        if LS['pub'][u] < kt: npub_pre += 1
        gaps[LS['pub'][u]] += ['v_add_u32 v%d, 1, v%d' % (VNON, VNON), ('waittag', ('s', u)), spub]
    def rdy(vp): return ['v_sub_u32 v%d, v%d, v%d' % (vp, vp, VNEED), 'v_cmp_ge_u32 vcc, 7, v%d' % vp, 's_and_b32 s%d, vcc_lo, s%d' % (sRDY, sPEND)]
    def take(r0, r1):
        return ['s_ff1_i32_b32 s%d, s%d' % (sHA, sRDY), 's_bitset0_b32 s%d, s%d' % (sRDY, sHA), 's_bitset0_b32 s%d, s%d' % (sPEND, sHA),
                's_min_u32 s%d, s%d, 255' % (sHA, sHA), 's_mul_i32 s%d, s%d, %d' % (sHA, sHA, HS), 's_add_u32 s%d, s%d, s%d' % (sHA, sHA, sPB)] + \
               ['buffer_load_dwordx4 %s, v%d, s[%d:%d], s%d offen offset:%d sc1' % (r, VL16, SWS, SWS + 3, sHA, o) for r, o in ((r0, 0), (r1, 1024))]
    nfl = 0
    for gi in range(4):
        kl = LS['chk'][gi]
        if LS['fl'][gi] > o0:
            nfl += 1
            gaps[LS['fl'][gi]] += [sfl(nfl)]
            gaps[kl] += rdy(VP2[nfl & 1])
        for j in range(4):
            its = take(ar(32 * gi + 8 * j, 4), ar(32 * gi + 8 * j + 4, 4))
            if kl < kt:
                gaps[kl + 1 + 2 * j] += its[:6]; gaps[kl + 2 + 2 * j] += its[6:]
            else:
                assert kl + j < kt + 32 + 8 * gi + 2 * j
                gaps[kl + j] += its
    gaps[o0 + OPT['flt']] += [sfl(0)]
    ks_ = LS['chk'][-1]
    gaps[o0 + 110] += ['buffer_load_dwordx4 %s, v%d, s[%d:%d], s%d offen' % (vr(XF[0], 4), VXO, SX, SX + 3, sXO),
                       'buffer_load_dwordx4 %s, v%d, s[%d:%d], s%d offen offset:16' % (vr(XF[1], 4), VXO, SX, SX + 3, sXO)]
    Y = YACC; E = 112; XX = 0
    its = ['s_mov_b32 s%d, %s' % (sT3, f2h(KINV)), 's_mov_b32 s%d, %s' % (sT4, f2h(-KINV * math.log2(math.e)))]
    for d in range(8):
        its += ['v_lshlrev_b32 v%d, 16, v%d' % (XX + 2 * d, XF[d >> 2] + (d & 3)), 'v_and_b32 v%d, s%d, v%d' % (XX + 2 * d + 1, sMASK, XF[d >> 2] + (d & 3))]
    spread(gaps, its, kt + 12, kt + 20)
    its = ['v_mul_f32 v%d, s%d, v%d' % (E + i, sT4, Y + i) for i in range(16)]
    its += ['v_exp_f32 v%d, v%d' % (E + i, E + i) for i in range(16)]
    for i in range(16): its += ['v_mul_f32 v%d, s%d, v%d' % (Y + i, sT3, Y + i), 'v_add_f32 v%d, 1.0, v%d' % (E + i, E + i)]
    its += ['v_rcp_f32 v%d, v%d' % (E + i, E + i) for i in range(16)]
    its += ['v_mul_f32 v%d, v%d, v%d' % (Y + i, Y + i, E + i) for i in range(16)]
    spread(gaps, its, kt + 33, kt + 46)

    def emit_reads(k):
        s, rd, fn = M[k]
        assert s in certified, (k, s)
        af = AF[k % PF]
        for mn, w, base, off in rd:
            width = 4 if mn.endswith('b128') else 2
            g('%s %s, v%d offset:%d' % (mn, vr(af + w, width), base, off))
    certified = {0}
    dmaq = dma_items(2) + dma_items(3)
    for k in range(PF): emit_reads(k)
    for s in norm_items(0): g(s)
    since = 0
    stamp_at = {idx[('p1', 14)], kyp, idx[('qk', 0)], idx[('qk', 4)], idx[('qk', 8)], o0, kt}
    if OPT.get('stk'): stamp_at = {o0 + int(x) for x in OPT['stk'].split(',')}
    if OPT.get('stp'): stamp_at = {int(x) for x in OPT['stp'].split(',')}
    stamp4 = {0, idx[('qk', 0)], o0, kt}
    rare_sites = []
    oolines = []
    def spin(name, back, vp, vn, load):
        o = oolines
        o.append('%s:' % name)
        if vn:
            o.append('    s_cmp_lt_u32 s%d, 4' % sI)
            o.append('    s_cbranch_scc1 %s' % back)
        o.append('    s_mov_b32 s%d, 0' % sSPIN)
        o.append('%s_l:' % name)
        o.append('    s_sleep 2')
        o.append('    ' + load)
        o.append('    s_add_u32 s%d, s%d, 1' % (sSPIN, sSPIN))
        o.append('    s_cmp_gt_u32 s%d, %d' % (sSPIN, SPIN_MAX))
        o.append('    s_cbranch_scc1 %s' % back)
        o.append('    s_waitcnt vmcnt(0)')
        for x in (vp if isinstance(vp, list) else [vp]):
            o.append('    ' + x)
            o.append('    s_nop 1')
        o.append('    s_cbranch_vccnz %s_l' % name)
        o.append('    s_branch %s' % back)
    for k in range(NM):
        s, rd, fn = M[k]
        if k in stamp_at: st(1)
        if k in stamp4: st(4); st(4, real=True)
        if k % 2 == 0 and k + 1 < NM:
            a = AF[(k + 1) % PF]
            g.wait_regs(['v%d' % (a + 3), 'v%d' % (a + 1)])
        g(fn(AF[k % PF]))
        if k in bar_at:
            sb = bar_at[k]
            g.wait_tag(('st', sb + 1), False)
            if not (OPT.get('xbar') and sb >= 2): g('s_barrier')
            certified.add(sb + 1)
            if sb + 4 < NST and not (OPT.get('xdma') and sb >= 1): dmaq += dma_items(sb + 4)
            since = OPT['dmaper']
        dma = None
        since += 1
        if dmaq and (since >= (OPT['dmaper'] if k < o0 else OPT['dmo']) or len(dmaq) > 8):
            dma = dmaq.pop(0); since = 0
            if dma[0]: dma[0]()
        if k + PF < NM: emit_reads(k + PF)
        if dma: dma[1]()
        for it in gaps[k]:
            if isinstance(it, str):
                if OPT.get('xvalu') and it.startswith('v_') and (k < k27 - 15 or idx[('qk', 4)] <= k < idx[('pv', 14)]) and 'v_cmp' not in it and ('v%d,' % TA_) not in it and ('v%d,' % TB_) not in it: continue
                g(it); continue
            if it[0] == 'rare':
                j = it[1]
                g('s_cbranch_vccnz L1_tr%d' % j)
                g.label('L1_bk%d' % j)
                rare_sites.append(j)
            elif it[0] == 'tag': g(it[2], tag=it[1])
            elif it[0] == 'raw':
                g('s_nop 0'); g.raw('    ' + it[1]); g.pos += 1; g.vm.append((None, {'v%d' % TD_}, False))
            elif it[0] == 'waittag': g.wait_tag(it[1], False)
            elif it[0] == 'nonce':
                c = 'v_cmp_eq_u32 vcc, 0, v%d' % VNON
                g(c); g('s_nop 1'); g('s_cbranch_vccnz L1_spn'); g.label('L1_spn_b')
                spin('L1_spn', 'L1_spn_b', c, None, 'buffer_load_dword v%d, v%d, s[%d:%d], 0 offen sc1' % (VNON, VPOLL, SDBG, SDBG + 3))
            elif it[0] == 'poll':
                vp, vn = VPOLL, VNON
                c = 'v_cmp_ne_u32 vcc, v%d, v%d' % (vp, vn)
                nm = 'L1_sp' + it[1]
                g(c); g('s_nop 1'); g('s_cbranch_vccnz ' + nm); g.label(nm + '_b')
                spin(nm, nm + '_b', c, True, 'buffer_load_dword v%d, v%d, s[%d:%d], s%d offen sc1' % (vp, VFL, SWS, SWS + 3, sFC))
            elif it[0] == 'seq':
                for x in it[1]: (g(x) if isinstance(x, str) else g(x[1], tag=x[0]))
            elif it[0] == 'noty':
                g('s_cmp_lt_u32 s%d, 4' % sI)
                g('s_cbranch_scc1 L1_noty')
                nst_noty = st.n
    st(1)
    for x in rdy(VP2[0]): g(x)
    g('s_mov_b32 s%d, 0' % sSPIN)
    R = g.raw
    for r in range(16):
        R('    s_cmp_eq_u32 s%d, 0' % sPEND)
        R('    s_cbranch_scc1 L1_sum%d' % r)
        R('L1_r%d:' % r)
        R('    s_cmp_lg_u32 s%d, 0' % sRDY)
        R('    s_cbranch_scc1 L1_g%d' % r)
        R('    ' + sfl(0))
        R('    s_add_u32 s%d, s%d, 1' % (sSPIN, sSPIN))
        R('    s_cmp_gt_u32 s%d, %d' % (sSPIN, SPIN_MAX))
        R('    s_cbranch_scc1 L1_sum%d' % r)
        R('    s_waitcnt vmcnt(0)')
        for x in rdy(VP2[0]): R('    ' + x); R('    s_nop 1')
        R('    s_branch L1_r%d' % r)
        R('L1_g%d:' % r)
        for x in take(vr(128 + 8 * r, 4), vr(132 + 8 * r, 4)): R('    ' + x)
    for r in range(16, -1, -1):
        R('L1_sum%d:' % r)
        if r:
            R('    s_waitcnt vmcnt(0)')
            for q in range(2): R('    ' + MF(vr(SA, 16), vr(IA[q], 4), vr(128 + 8 * (r - 1) + 4 * q, 4), vr(SA, 16)))
    g.vm = []; g.fence()
    g('s_nop 15')
    for i in range(16): g('v_fma_f32 v%d, v%d, v%d, v%d' % (XX + i, Y + i, SA + i, XX + i))
    for d in range(8): g('v_cvt_pk_bf16_f32 v%d, v%d, v%d' % (E + d, XX + 2 * d, XX + 2 * d + 1))
    g('buffer_store_dwordx4 %s, v%d, s[%d:%d], s%d offen' % (vr(E, 4), VXO, SOUT, SOUT + 3, sXO))
    g('buffer_store_dwordx4 %s, v%d, s[%d:%d], s%d offen offset:16' % (vr(E + 4, 4), VXO, SOUT, SOUT + 3, sXO))
    st(5); st(real=True)
    st.dump(g, SWS, 2, STAMP_BASE, T[0])
    g.label('L1_end')
    g('s_endpgm')
    r = Gen()
    r.label('L1_noty')
    r('s_nop 15')
    for it in epi_items(6): r(it if isinstance(it, str) else it[2])
    r('v_add_u32 v%d, %d, v%d' % (VNON, 7 - npub_pre, VNON))
    r.waitall()
    r(spub)
    if OPT['stamp']:
        for i in range(nst_noty, st.n): r('s_memrealtime s[%d:%d]' % (sSTAMP + 2 * i, sSTAMP + 2 * i + 1))
        st.dump(r, SWS, 2, STAMP_BASE, T[0])
    r('s_endpgm')
    g.out += r.out + oolines
    for j in rare_sites:
        g.label('L1_tr%d' % j)
        g.raw('    s_mov_b32 s%d, %d' % (sIDX, j))
        g.raw('    s_branch L1_rare%d' % (j & 1))
    for par in range(2):
        r = Gen()
        S = SB[par]
        r.label('L1_rare%d' % par)
        r('s_nop 15')
        r('v_mov_b32 v%d, v%d' % (T[4], T[5]))
        r('v_permlane32_swap_b32 v%d, v%d' % (T[5], T[4]))
        r('v_max3_f32 v%d, v%d, v%d, 0' % (T[5], T[5], T[4]))
        r('v_exp_f32 v%d, -v%d' % (T[4], T[5]))
        for i in range(16):
            r('v_sub_f32 v%d, v%d, v%d' % (S + i, S + i, T[5]))
            r('v_sub_f32 v%d, v%d, v%d' % (NEGM + i, NEGM + i, T[5]))
        r('v_mul_f32 v%d, v%d, v%d' % (VL, VL, T[4]))
        for i in range(128):
            tt = T[i & 1]
            r('v_accvgpr_read_b32 v%d, a%d' % (tt, i))
            r('v_mul_f32 v%d, v%d, v%d' % (tt, tt, T[4]))
            r('v_accvgpr_write_b32 a%d, v%d' % (i, tt))
        r('s_nop 3')
        js = [j for j in rare_sites if (j & 1) == par]
        for j in js[:-1]:
            r('s_cmp_eq_u32 s%d, %d' % (sIDX, j))
            r('s_cbranch_scc1 L1_bk%d' % j)
        r('s_branch L1_bk%d' % js[-1])
        g.out += r.out
    sys.stderr.write('K1: %d mfma, nops %d, counts %s\n' % (NM, g.nnop, g.count))
    return g.out

def main():
    out = []
    hdr = open('cdna_kernels/%s.s.ref' % NAME).read().split('\n')
    for l in hdr:
        if l.startswith('; @launch'): break
        out.append(l)
    nm = NAME + '_kernel'
    out.append('; @launch grid=(256,1,1) block=(256,1,1) lds=163840')
    out.append('.amdgcn_target "amdgcn-amd-amdhsa--gfx950"')
    out.append('.text')
    out += ['.globl %s' % nm, '.p2align 8', '.type %s,@function' % nm]
    out += gen_k1()
    out.append('.section .rodata,"a"')
    out += ['.p2align 6', '.amdhsa_kernel %s' % nm, '  .amdhsa_next_free_vgpr 512', '  .amdhsa_next_free_sgpr 102',
            '  .amdhsa_accum_offset 256', '  .amdhsa_group_segment_fixed_size 0', '  .amdhsa_kernarg_size 96',
            '  .amdhsa_user_sgpr_count 2', '  .amdhsa_user_sgpr_kernarg_segment_ptr 1',
            '  .amdhsa_system_sgpr_workgroup_id_x 1', '.end_amdhsa_kernel']
    open(sys.argv[1], 'w').write('\n'.join(out) + '\n')
main()
```

```python
import sys, struct, math
from asmlib import *

def f2h(x): return '0x%08x' % struct.unpack('<I', struct.pack('<f', x))[0]

NAME = 'recurrent_scan__sliding_block_cached__glu_gated_bilinear__prompt'
OPT = dict(stamp=0, tcode=1, grp='x0123456', pf=6, dmaper=3, barpos=8, hx=2, wsoff=0, tw1=1, twd=6, tkv=16, two=9, epw=12, dmo=1, vq=6,
           direct='0,1,2,5,8,11', ypace=11, ypd=40, yfl=20, ychk=90, yend=0,
           pub='110,142,174,206,222,232,233', fl='231,0,0,0', chk='234,238,242,246', flt=250, fst=256)
for a in sys.argv[2:]:
    k, v = a.split('=')
    OPT[k] = int(v) if v.lstrip('-').isdigit() else v
STF = {0: ' sc1', 1: '', 2: ' sc0 sc1', 3: ' sc1 nt', 4: ' nt'}[OPT.get('stf', 0)]

CS = math.log2(math.e) / 16.0
KINV = 1.0 / (CS * CS)
SP_BASE = OPT['wsoff'] << 20
YP_OFF = 0x1C00000
FL_BASE = SP_BASE + 0x3800000
STAMP_BASE = 0x3E00000
FST = OPT.get('fst', 4352)
WS_SIZE = 268435456
OOB = 0x40000000
TTHR = 24.0
SPIN_MAX = 1 << 17

PF = OPT['pf']
AF = [4 * i for i in range(PF)]
DV1 = list(range(28, 36)); DV2 = list(range(36, 44)); DV3 = list(range(44, 52))
VB = [[52 + 4 * s + i for i in range(4)] for s in range(3)]
VG = [64, 65, 66]
OB = [[67 + 2 * s + i for i in range(2)] for s in range(3)]
KB = [[73 + 8 * s + i for i in range(8)] for s in range(3)]
VL16 = 97; VL = 98; VA = 99; VBB = 100; VMX = 101; VRI = 102
VFO = 99; VFL = 100
T = list(range(103, 112))
NEGM = 112; ST = 112
X = 128; Q = 128; SB = [192, 208]; PB = [224, 228]
VNON = 28; VPOLL = 29; VP2 = [30, 31]; VNEED = 32; VSTEP = 33; VXO = 101
OF = 128; SACC = [192, 224]
HF = [24, 28, 32, 112, 116, 120, 124]; YB = [192, 208, 224, 240]
YACC = 76; SA = 36; XF = [60, 92]; IA = [52, 56]
HS = 64 * 28672
SX, S1, SKV, SWO, SWD, SWS, SDBG, SOUT = 28, 32, 36, 40, 44, 48, 4, 8
sW, sH, sRT, sKVH, sO1, sST1, sOKV, sOWO, sQB = 52, 53, 54, 55, 56, 57, 58, 59, 60
sT0, sT1, sT2, sONE, sMASK, sTHR, sIDX, sSP, sYP, sAD3, sT3, sT4 = 61, 62, 63, 64, 65, 66, 67, 68, 69, 70, 71, 72
sI, sCT, sRO, sOWD, sFP, sFC, sYB, sPB, sXO, sNON, sSPIN = 12, 13, 14, 15, 16, 17, 18, 19, 20, 21, 22
sWOE, sSPE, sPEND = 23, 24, 25
sRDY, sHA = 26, 27
sSTAMP = 76
CL = 5
NST = 42

def slot_off(stage):
    s = stage % 5
    return s // 2, (s % 2) * 32768

def srd(g, d, p, size):
    g('s_mov_b32 s%d, s%d' % (d, p))
    g('s_and_b32 s%d, s%d, 0xffff' % (d + 1, p + 1))
    g('s_mov_b32 s%d, 0x%x' % (d + 2, size))
    g('s_mov_b32 s%d, 0x20000' % (d + 3))

class Stamper:
    def __init__(self, g): self.g = g; self.n = 0
    def __call__(self, lvl=3, real=False):
        if real and lvl == 3: lvl = 7
        if (OPT['stamp'] & lvl) and self.n < 12:
            self.g('%s s[%d:%d]' % ('s_memrealtime' if (real or OPT.get('real')) else 's_memtime', sSTAMP + 2 * self.n, sSTAMP + 2 * self.n + 1))
            self.n += 1
    def dump(self, g, srdn, wgs, base, vt):
        if not OPT['stamp']: return
        g.waitall()
        g('s_lshl_b32 s%d, s%d, 2' % (sT0, wgs))
        g('s_add_u32 s%d, s%d, s%d' % (sT0, sT0, sW))
        g('s_lshl_b32 s%d, s%d, 6' % (sT0, sT0))
        g('s_add_u32 s%d, s%d, 0x%x' % (sT0, sT0, base))
        g('v_mov_b32 v%d, 0' % (vt + 1))
        for i in range(self.n):
            g('v_mov_b32 v%d, s%d' % (vt, sSTAMP + 2 * i))
            g('buffer_store_dword v%d, v%d, s[%d:%d], s%d offen offset:%d' % (vt, vt + 1, srdn, srdn + 3, sT0, 4 * i))
            g('s_nop 1')

def spread(gaps, items, lo, hi):
    n = hi - lo + 1
    m = len(items)
    for i, it in enumerate(items):
        gaps[lo + (i * n) // m].append(it)

def quota(gaps, items, lo, q):
    for i, it in enumerate(items):
        gaps[lo + i // q].append(it)

def MF(d, a, b, c): return 'v_mfma_f32_32x32x16_bf16 %s, %s, %s, %s' % (d, a, b, c)

def gen_k1():
    g = Gen(); st = Stamper(g)
    KN = NAME + '_kernel'
    g.label(KN)
    g('s_cmp_ge_u32 s2, 256')
    g('s_cbranch_scc1 L1_end')
    st(7); st(real=True)
    g('s_load_dwordx16 s[4:19], s[0:1], 0')
    g('s_load_dwordx8 s[20:27], s[0:1], 64')
    L, N, HH, R_, C_, GP, SW = 240, 241, 242, 243, 244, 245, 249
    t0, t1, t2, t3, t4 = 250, 251, 252, 253, 254
    XV = T[0:4]
    g('v_lshrrev_b32 v%d, 6, v0' % t0)
    g('v_and_b32 v%d, 63, v0' % L)
    g('v_readfirstlane_b32 s%d, v%d' % (sW, t0))
    HX = OPT['hx']; lhx = HX.bit_length() - 1
    ng = 16 // HX
    g('s_and_b32 s%d, s2, 7' % sT0)
    g('s_lshr_b32 s%d, s2, 3' % sT1)
    g('s_and_b32 s%d, s%d, %d' % (sT2, sT0, ng - 1))
    g('s_lshl_b32 s%d, s%d, %d' % (sH, sT2, lhx))
    g('s_and_b32 s%d, s%d, %d' % (sT2, sT1, HX - 1))
    g('s_add_u32 s%d, s%d, s%d' % (sH, sH, sT2))
    g('s_lshr_b32 s%d, s%d, %d' % (sT2, sT0, 4 - lhx))
    g('s_lshl_b32 s%d, s%d, %d' % (sRT, sT2, 5 - lhx))
    g('s_lshr_b32 s%d, s%d, %d' % (sT2, sT1, lhx))
    g('s_add_u32 s%d, s%d, s%d' % (sRT, sRT, sT2))
    g('s_lshr_b32 s%d, s%d, 1' % (sKVH, sH))
    g('s_lshl_b32 s%d, s%d, 13' % (sQB, sW))
    g('s_lshl_b32 s%d, s%d, 2' % (sT3, sRT))
    g('s_add_u32 s%d, s%d, s%d' % (sT3, sT3, sW))
    g('s_mul_i32 s%d, s%d, %d' % (sT4, sT3, 32 * 896))
    g('v_lshrrev_b32 v%d, 3, v%d' % (t0, L))
    g('v_and_b32 v%d, 7, v%d' % (t1, L))
    g('v_lshrrev_b32 v%d, 4, v%d' % (t2, L))
    g('v_xor_b32 v%d, v%d, v%d' % (t1, t1, t2))
    g('v_mul_u32_u24 v%d, 896, v%d' % (t0, t0))
    g('v_lshl_add_u32 v%d, v%d, 4, v%d' % (XV[0], t1, t0))
    g('v_xor_b32 v%d, 64, v%d' % (t1, XV[0]))
    g('v_add_u32 v%d, %d, v%d' % (XV[2], 2 * (7168 - 1024), XV[0]))
    g('v_add_u32 v%d, %d, v%d' % (XV[1], 7168 - 1024, t1))
    g('v_add_u32 v%d, %d, v%d' % (XV[3], 3 * (7168 - 1024), t1))
    if OPT['tcode']:
        g('s_getpc_b64 s[74:75]')
        g.label('L1_pc')
        g('s_lshl_b32 s%d, s%d, 2' % (sT2, sT1))
        g('s_add_u32 s%d, s%d, s%d' % (sT2, sT2, sW))
        g('s_mul_i32 s%d, s%d, %d' % (sT2, sT2, CL * 128))
        g('v_min_u32 v%d, %d, v%d' % (t3, CL - 1, L))
        g('v_lshlrev_b32 v%d, 7, v%d' % (t3, t3))
        g('v_add_u32 v%d, s%d, v%d' % (t3, sT2, t3))
        g('v_min_u32 v%d, L1_last-L1_pc, v%d' % (t3, t3))
        g('v_mov_b32 v25, s75')
        g('v_add_co_u32 v24, vcc, s74, v%d' % t3)
        g('v_addc_co_u32 v25, vcc, 0, v25, vcc')
        g('global_load_dword v27, v[24:25], off')
    st(2)
    g('s_waitcnt lgkmcnt(0)')
    st(2)
    srd(g, SX, 4, 2048 * 896)
    pre = []
    P = pre.append
    P('v_and_b32 v%d, 31, v%d' % (N, L))
    P('v_lshrrev_b32 v%d, 5, v%d' % (HH, L))
    P('v_bfe_u32 v%d, v%d, 2, 2' % (R_, L))
    P('v_and_b32 v%d, 3, v%d' % (C_, L))
    P('v_bfe_u32 v%d, v%d, 4, 1' % (GP, L))
    P('v_lshrrev_b32 v%d, 1, v%d' % (t0, C_))
    P('v_and_b32 v%d, 1, v%d' % (t1, C_))
    P('v_lshl_or_b32 v%d, v%d, 1, v%d' % (SW, t1, t0))
    P('v_lshl_add_u32 v%d, v%d, 3, v%d' % (t2, HH, R_))
    P('v_lshlrev_b32 v%d, 9, v%d' % (t3, t2))
    P('v_lshl_add_u32 v%d, v%d, 5, v%d' % (t3, GP, t3))
    P('v_lshl_add_u32 v%d, v%d, 3, v%d' % (t3, SW, t3))
    for i in range(4):
        P('v_xor_b32 v%d, %d, v%d' % (t4, i, R_))
        P('v_lshl_add_u32 v%d, v%d, 6, v%d' % (VB[0][i], t4, t3))
        P('v_add_u32 v%d, 0x10000, v%d' % (VB[1][i], VB[0][i]))
        P('v_add_u32 v%d, 0x20000, v%d' % (VB[2][i], VB[0][i]))
    P('v_mul_u32_u24 v%d, 224, v%d' % (t3, t2))
    P('v_mul_u32_u24 v%d, 8320, v%d' % (t4, GP))
    P('v_add_u32 v%d, v%d, v%d' % (t3, t3, t4))
    P('v_lshl_add_u32 v%d, v%d, 3, v%d' % (VG[0], SW, t3))
    P('v_add_u32 v%d, 0x10000, v%d' % (VG[1], VG[0]))
    P('v_add_u32 v%d, 0x20000, v%d' % (VG[2], VG[0]))
    P('v_lshl_add_u32 v%d, v%d, 1, v%d' % (t0, GP, t0))
    P('v_lshl_add_u32 v%d, v%d, 2, v%d' % (t0, t1, t0))
    P('v_lshlrev_b32 v%d, 3, v%d' % (t0, t0))
    P('v_lshl_add_u32 v%d, v%d, 7, v%d' % (t0, t2, t0))
    P('v_lshrrev_b32 v%d, 1, v%d' % (t1, R_))
    for i in range(2):
        P('v_xor_b32 v%d, %d, v%d' % (t4, i, t1))
        P('v_lshl_add_u32 v%d, v%d, 6, v%d' % (OB[0][i], t4, t0))
        P('v_add_u32 v%d, 0x10000, v%d' % (OB[1][i], OB[0][i]))
        P('v_add_u32 v%d, 0x20000, v%d' % (OB[2][i], OB[0][i]))
    P('v_and_b32 v%d, 0x13, v%d' % (t0, N))
    P('v_bfe_u32 v%d, v%d, 2, 1' % (t1, N))
    P('v_lshl_or_b32 v%d, v%d, 3, v%d' % (t0, t1, t0))
    P('v_bfe_u32 v%d, v%d, 3, 1' % (t1, N))
    P('v_lshl_or_b32 v%d, v%d, 2, v%d' % (t0, t1, t0))
    P('v_and_b32 v%d, 15, v%d' % (t1, t0))
    P('v_xor_b32 v%d, v%d, v%d' % (t1, t1, HH))
    P('v_lshlrev_b32 v%d, 9, v%d' % (t0, t0))
    for i in range(8):
        P('v_xor_b32 v%d, %d, v%d' % (t4, 2 * i, t1))
        P('v_lshl_add_u32 v%d, v%d, 4, v%d' % (KB[0][i], t4, t0))
        P('v_add_u32 v%d, 0x10000, v%d' % (KB[1][i], KB[0][i]))
        P('v_add_u32 v%d, 0x20000, v%d' % (KB[2][i], KB[0][i]))
    P('v_lshlrev_b32 v%d, 4, v%d' % (VL16, L))
    P('v_mov_b32 v%d, 0' % VL)
    XR = [[NEGM + 4 * s + i for i in range(4)] for s in range(2)]
    P('v_bfe_u32 v%d, v%d, 1, 3' % (t0, N))
    P('v_xor_b32 v%d, v%d, v%d' % (t0, t0, HH))
    P('v_lshlrev_b32 v%d, 7, v%d' % (t1, N))
    P('v_add_u32 v%d, s%d, v%d' % (t1, sQB, t1))
    P('v_add_u32 v%d, 0x8000, v%d' % (t1, t1))
    for i in range(4):
        P('v_xor_b32 v%d, %d, v%d' % (t4, 2 * i, t0))
        P('v_lshl_add_u32 v%d, v%d, 4, v%d' % (XR[0][i], t4, t1))
        P('v_add_u32 v%d, 0x10000, v%d' % (XR[1][i], XR[0][i]))
    P('v_and_b32 v%d, 7, v%d' % (t0, L))
    P('v_lshlrev_b32 v%d, 2, v%d' % (t1, GP))
    P('v_xor_b32 v%d, v%d, v%d' % (t0, t0, t1))
    P('v_lshlrev_b32 v%d, 4, v%d' % (t0, t0))
    P('v_lshrrev_b32 v%d, 3, v%d' % (t1, L))
    P('v_mul_u32_u24 v%d, 896, v%d' % (t1, t1))
    P('v_add_u32 v%d, v%d, v%d' % (t0, t0, t1))
    P('s_mul_i32 s%d, s%d, %d' % (sOWO, sH, 256 * 896))
    P('s_mul_i32 s%d, s%d, %d' % (sT2, sW, 64 * 896))
    P('s_add_u32 s%d, s%d, s%d' % (sOWO, sOWO, sT2))
    for i in range(8):
        P('v_add_u32 v%d, %d, v%d' % (DV3[i], 8 * i * 896 - 1024 * (i & 3), t0))
    for i in range(4): P('v_mov_b32 v%d, 0' % T[4 + i])
    npre = (len(pre) + 27) // 28
    for cb in range(7):
        g('s_add_u32 m0, s%d, %d' % (sQB, (cb // 2 + 1) * 32768 + (cb & 1) * 4096))
        for gi in range(4):
            g('buffer_load_dwordx4 v%d, s[%d:%d], s%d offen offset:%d lds' % (XV[gi], SX, SX + 3, sT4, 1024 * gi), tag=('x', cb))
            for s in pre[:npre]: g(s)
            pre = pre[npre:]
        g('s_add_u32 s%d, s%d, 128' % (sT4, sT4))
    assert not pre
    st(2)
    g('s_cmp_lt_u32 s%d, 2' % sW)
    g('s_cbranch_scc0 L1_w23')
    g.fence()
    srd(g, S1, 10, 448 * 8192)
    srd(g, SKV, 6, 8 * 2048 * 512)
    g('s_mov_b32 s%d, %d' % (sST1, 32 * 8192))
    g('s_lshl_b32 s%d, s%d, 20' % (sOKV, sKVH))
    g('s_add_u32 s%d, s%d, %d' % (sOKV, sOKV, 1536 * 512))
    g('s_lshl_b32 s%d, s%d, 9' % (sO1, sH))
    g('s_lshl_b32 s%d, s%d, 4' % (sT2, sW))
    g('v_add_u32 v%d, s%d, v%d' % (t0, sT2, HH))
    for par in range(2):
        g('v_add_u32 v%d, %d, v%d' % (t1, 2 * par, HH))
        g('v_lshlrev_b32 v%d, 2, v%d' % (t1, t1))
        g('v_xor_b32 v%d, v%d, v%d' % (t1, t1, N))
        g('v_lshlrev_b32 v%d, 4, v%d' % (t1, t1))
        g('v_lshl_add_u32 v%d, v%d, 13, v%d' % (t1, t0, t1))
        for i in range(par, 8, 2):
            g('v_add_u32 v%d, %d, v%d' % (DV1[i], 2 * i * 8192 - 1024 * (i & 3), t1))
    g('v_xor_b32 v%d, v%d, v%d' % (t2, HH, N))
    g('v_lshlrev_b32 v%d, 9, v%d' % (t0, t0))
    for i in range(8):
        g('v_xor_b32 v%d, %d, v%d' % (t1, 2 * i, t2))
        g('v_lshl_add_u32 v%d, v%d, 4, v%d' % (t1, t1, t0))
        g('v_add_u32 v%d, %d, v%d' % (DV2[i], 1024 * i - 1024 * (i & 3), t1))
    g('s_mul_i32 s%d, s%d, 28' % (sT0, sRT))
    g('s_mul_i32 s%d, s%d, 14' % (sT1, sW))
    g('s_add_u32 s%d, s%d, s%d' % (sT0, sT0, sT1))
    g('s_lshl_b32 s%d, s%d, 13' % (sT0, sT0))
    g('s_add_u32 s%d, s%d, s%d' % (sIDX, sT0, sO1))
    g('s_mov_b32 s%d, 8192' % sT4)
    g('s_branch L1_wj')
    g.label('L1_w23')
    g.fence()
    g('s_cmp_eq_u32 s%d, 2' % sW)
    g('s_cselect_b32 s%d, s16, s18' % S1)
    g('s_cselect_b32 s%d, s17, s19' % (S1 + 1))
    g('s_cselect_b32 s%d, 0, 8' % sT0)
    g('s_and_b32 s%d, s%d, 0xffff' % (S1 + 1, S1 + 1))
    g('s_mov_b32 s%d, 0x%x' % (S1 + 2, 448 * 3584))
    g('s_mov_b32 s%d, 0x20000' % (S1 + 3))
    srd(g, SKV, 8, 8 * 2048 * 512)
    g('s_mov_b32 s%d, %d' % (sST1, 32 * 3584))
    g('s_lshl_b32 s%d, s%d, 20' % (sOKV, sKVH))
    g('s_add_u32 s%d, s%d, %d' % (sOKV, sOKV, 1536 * 512 - 16384))
    g('s_mul_i32 s%d, s%d, 224' % (sO1, sH))
    g('s_and_b32 s%d, s%d, 1' % (sT2, sW))
    g('s_lshl_b32 s%d, s%d, 4' % (sT2, sT2))
    g('s_mov_b32 s%d, 4682' % sT4)
    g('v_mov_b32 v%d, 0x%x' % (t4, OOB))
    g('v_subrev_u32 v%d, s%d, v%d' % (t3, sT0, L))
    for i in range(8):
        g('v_add_u32 v%d, %d, v%d' % (t0, 64 * i, t3))
        g('v_cmp_gt_u32 vcc, 448, v%d' % t0)
        g('v_mul_u32_u24 v%d, s%d, v%d' % (t1, sT4, t0))
        g('v_lshrrev_b32 v%d, 16, v%d' % (t1, t1))
        g('v_mul_u32_u24 v%d, %d, v%d' % (t1, 3584 - 224, t1))
        g('v_lshl_add_u32 v%d, v%d, 4, v%d' % (t1, t0, t1))
        g('v_subrev_u32 v%d, %d, v%d' % (t1, 1024 * (i & 3), t1))
        g('v_cndmask_b32 v%d, v%d, v%d, vcc' % (DV1[i], t4, t1))
    g('v_add_u32 v%d, s%d, v%d' % (t0, sT2, HH))
    for par in range(2):
        g('v_add_u32 v%d, %d, v%d' % (t1, 2 * par, HH))
        g('v_lshlrev_b32 v%d, 2, v%d' % (t1, t1))
        g('v_xor_b32 v%d, v%d, v%d' % (t1, t1, N))
        g('v_lshlrev_b32 v%d, 4, v%d' % (t1, t1))
        g('v_lshl_add_u32 v%d, v%d, 9, v%d' % (t1, t0, t1))
        for i in range(par, 8, 2):
            g('v_add_u32 v%d, %d, v%d' % (DV2[i], 1024 * i - 1024 * (i & 3), t1))
    g('s_lshl_b32 s%d, s%d, 1' % (sT0, sRT))
    g('s_and_b32 s%d, s%d, 1' % (sT1, sH))
    g('s_add_u32 s%d, s%d, s%d' % (sT0, sT0, sT1))
    g('s_mul_i32 s%d, s%d, %d' % (sT0, sT0, 14 * 3584))
    g('s_mul_i32 s%d, s%d, 448' % (sT1, sKVH))
    g('s_and_b32 s%d, s%d, 0xffffff80' % (sT1, sT1))
    g('s_add_u32 s%d, s%d, s%d' % (sIDX, sT0, sT1))
    g('s_mov_b32 s%d, 3584' % sT4)
    g.label('L1_wj')
    g.fence()
    g('s_nop 1')

    def dma_items(stage):
        if stage < 14: dv, s, so, adv = DV1, S1, sO1, 's_add_u32 s%d, s%d, s%d' % (sO1, sO1, sST1)
        elif stage < 18: dv, s, so, adv = DV3, SWD, sOWD, ('s_add_u32 s%d, s%d, 256' % (sOWD, sOWD) if stage != 16 else 's_add_u32 s%d, s%d, s%d' % (sOWD, sOWD, sAD3))
        elif stage < 35: dv, s, so, adv = DV2, SKV, sOKV, 's_add_u32 s%d, s%d, 0x4000' % (sOKV, sOKV)
        else: dv, s, so, adv = DV3, SWO, sOWO, ['s_add_u32 s%d, s%d, 128' % (sOWO, sOWO), 's_cmp_eq_u32 s%d, s%d' % (sOWO, sWOE),
                                                's_cselect_b32 s%d, 896, 0' % sT2, 's_sub_u32 s%d, s%d, s%d' % (sOWO, sOWO, sT2)]
        items = []
        for i in range(8):
            def f(i=i):
                g('buffer_load_dwordx4 v%d, s[%d:%d], s%d offen offset:%d lds' % (dv[i], s, s + 3, so, 1024 * (i & 3)), tag=('st', stage))
                if i == 7:
                    for a_ in ([adv] if isinstance(adv, str) else adv): g(a_)
            def m(i=i):
                g('s_add_u32 m0, s%d, %d' % (sQB, (stage % 5) * 32768 + 1024 * i))
            items.append((m if i % 4 == 0 else None, f))
        return items
    def dma_now(stage):
        for m, f in dma_items(stage):
            if m: m()
            f()
    st(2)
    dma_now(0)
    st(2)
    srd(g, SWO, 12, 4096 * 896)
    srd(g, SWD, 20, 1792 * 896)
    srd(g, SWS, 26, WS_SIZE)
    srd(g, SDBG, 24, 256)
    srd(g, SOUT, 22, 2048 * 896)
    g('s_or_b32 s%d, s2, s%d' % (sT0, sW))
    g('s_cmp_lg_u32 s%d, 0' % sT0)
    g('s_cbranch_scc1 L1_non')
    g.raw('    s_memrealtime s[74:75]')
    g.raw('    v_mov_b32 v%d, 0' % t1)
    g.raw('    s_waitcnt lgkmcnt(0)')
    g.raw('    s_or_b32 s74, s74, 1')
    g.raw('    v_mov_b32 v%d, s74' % t0)
    g.raw('    buffer_store_dword v%d, v%d, s[%d:%d], 0 offen sc1' % (t0, t1, SDBG, SDBG + 3))
    g.label('L1_non')
    g.vm.append(('non', set(), True))
    g.vm.pop()
    g('s_mov_b32 s%d, 0x3f803f80' % sONE)
    g('s_mov_b32 s%d, 0xffff0000' % sMASK)
    g('s_mov_b32 s%d, %s' % (sTHR, f2h(TTHR)))
    g('s_lshl_b32 s%d, s%d, 6' % (sSP, sH))
    g('s_add_u32 s%d, s%d, s%d' % (sSP, sSP, sT3))
    g('s_mul_i32 s%d, s%d, 28672' % (sSP, sSP))
    if SP_BASE: g('s_add_u32 s%d, s%d, 0x%x' % (sSP, sSP, SP_BASE))
    g('s_add_u32 s%d, s%d, 28672' % (sSPE, sSP))
    g('s_add_u32 s%d, s%d, 0x%x' % (sYP, sSP, YP_OFF))
    g('s_add_u32 s%d, s%d, 896' % (sWOE, sOWO))
    g('s_mul_i32 s%d, s%d, 37' % (sT0, sH))
    g('s_lshr_b32 s%d, s%d, 8' % (sT0, sT0))
    g('s_mul_i32 s%d, s%d, 7' % (sT0, sT0))
    g('s_sub_u32 s%d, s%d, s%d' % (sT0, sH, sT0))
    g('s_lshl_b32 s%d, s%d, 7' % (sT1, sT0))
    g('s_add_u32 s%d, s%d, s%d' % (sOWO, sOWO, sT1))
    g('s_lshl_b32 s%d, s%d, 12' % (sT1, sT0))
    g('s_add_u32 s%d, s%d, s%d' % (sSP, sSP, sT1))
    g('s_mul_i32 s%d, s%d, %d' % (sOWD, sH, 112 * 896))
    g('s_and_b32 s%d, s%d, 1' % (sT1, sW))
    g('s_mul_i32 s%d, s%d, %d' % (sT1, sT1, 64 * 896))
    g('s_add_u32 s%d, s%d, s%d' % (sOWD, sOWD, sT1))
    g('s_lshr_b32 s%d, s%d, 1' % (sT1, sW))
    g('s_lshl_b32 s%d, s%d, 29' % (sAD3, sT1))
    g('s_add_u32 s%d, s%d, 256' % (sAD3, sAD3))
    g('s_lshl_b32 s%d, s%d, 7' % (sT1, sT1))
    g('s_add_u32 s%d, s%d, s%d' % (sOWD, sOWD, sT1))
    g('s_lshl_b32 s%d, s%d, 4' % (sFP, sT3))
    g('s_add_u32 s%d, s%d, s%d' % (sFP, sFP, sH))
    g('s_mul_i32 s%d, s%d, %d' % (sFP, sFP, FST))
    g('s_add_u32 s%d, s%d, 0x%x' % (sFP, sFP, FL_BASE))
    g('s_lshr_b32 s%d, s2, 3' % sI)
    g('s_sub_i32 s%d, s%d, 4' % (sCT, sI))
    g('s_max_i32 s%d, s%d, 0' % (sCT, sCT))
    g('s_mul_i32 s%d, s%d, 4682' % (sT0, sCT))
    g('s_lshr_b32 s%d, s%d, 16' % (sT0, sT0))
    g('s_mul_i32 s%d, s%d, 14' % (sT1, sT0))
    g('s_sub_u32 s%d, s%d, s%d' % (sCT, sCT, sT1))
    g('s_and_b32 s%d, s%d, 1' % (sT0, sT0))
    g('s_and_b32 s%d, s2, 7' % sT1)
    g('s_lshl_b32 s%d, s%d, 1' % (sT1, sT1))
    g('s_add_u32 s%d, s%d, s%d' % (sT0, sT0, sT1))
    g('s_lshl_b32 s%d, s%d, 2' % (sRO, sT0))
    g('s_add_u32 s%d, s%d, s%d' % (sRO, sRO, sW))
    g('s_mul_i32 s%d, s%d, %d' % (sFC, sRO, 16 * FST))
    g('s_add_u32 s%d, s%d, 0x%x' % (sFC, sFC, FL_BASE))
    g('s_mul_i32 s%d, s%d, 14' % (sPB, sRO))
    g('s_add_u32 s%d, s%d, s%d' % (sPB, sPB, sCT))
    g('s_lshl_b32 s%d, s%d, 11' % (sPB, sPB))
    if SP_BASE: g('s_add_u32 s%d, s%d, 0x%x' % (sPB, sPB, SP_BASE))
    g('s_mov_b32 s%d, 0xffff' % sPEND)
    g('s_mov_b32 s%d, 0' % sSPIN)
    g('s_mul_i32 s%d, s%d, %d' % (sXO, sRO, 32 * 896))
    g('s_lshl_b32 s%d, s%d, 6' % (sT0, sCT))
    g('s_add_u32 s%d, s%d, s%d' % (sXO, sXO, sT0))
    g('s_add_u32 s%d, s%d, 0x%x' % (sYB, sPB, YP_OFF))
    st(2)
    A0, A1, A2, A3 = T[4:8]
    def xread(cb):
        g.wait_tag(('x', cb), False)
        o = (cb // 2) * 32768 + (cb & 1) * 4096
        for tt in range(4):
            g('ds_read_b128 %s, v%d offset:%d' % (vr(X + 16 * cb + 4 * tt, 4), XR[o >> 16][tt], o & 0xffff))
    def stats(cb):
        for d in range(16):
            r = X + 16 * cb + d
            g('v_dot2c_f32_bf16 v%d, s%d, v%d' % ((A0, A1)[d & 1], sONE, r))
            g('v_dot2c_f32_bf16 v%d, v%d, v%d' % ((A2, A3)[d & 1], r, r))
    xread(0)
    for cb in range(7):
        if cb < 6: xread(cb + 1)
        if cb == 6:
            g.wait(lg=0)
            st(2)
            dma_now(1)
        stats(cb)
    g('v_add_f32 v%d, v%d, v%d' % (A0, A0, A1))
    g('v_add_f32 v%d, v%d, v%d' % (A2, A2, A3))
    g('v_mov_b32 v%d, v%d' % (A1, A0))
    g('v_mov_b32 v%d, v%d' % (A3, A2))
    g('v_permlane32_swap_b32 v%d, v%d' % (A0, A1))
    g('v_permlane32_swap_b32 v%d, v%d' % (A2, A3))
    g('v_add_f32 v%d, v%d, v%d' % (A0, A0, A1))
    g('v_add_f32 v%d, v%d, v%d' % (A2, A2, A3))
    g('v_mul_f32 v%d, %s, v%d' % (A0, f2h(1.0 / 448), A0))
    g('v_mul_f32 v%d, %s, v%d' % (A2, f2h(1.0 / 448), A2))
    g('v_fma_f32 v%d, -v%d, v%d, v%d' % (A2, A0, A0, A2))
    g('v_max_f32 v%d, 0, v%d' % (A2, A2))
    g('v_add_f32 v%d, %s, v%d' % (A2, f2h(1e-5), A2))
    g('v_rsq_f32 v%d, v%d' % (A2, A2))
    g('v_mul_f32 v%d, %s, v%d' % (VA, f2h(CS), A2))
    g('v_mul_f32 v%d, -v%d, v%d' % (VBB, A0, VA))

    def norm_items(t):
        its = []
        for d in range(4):
            r = X + 4 * t + d
            a, b = T[2 * (d & 1)], T[2 * (d & 1) + 1]
            its += ['v_lshlrev_b32 v%d, 16, v%d' % (a, r),
                    'v_and_b32 v%d, s%d, v%d' % (b, sMASK, r),
                    'v_fma_f32 v%d, v%d, v%d, v%d' % (a, a, VA, VBB),
                    'v_fma_f32 v%d, v%d, v%d, v%d' % (b, b, VA, VBB),
                    'v_cvt_pk_bf16_f32 v%d, v%d, v%d' % (r, a, b)]
        return its
    g.wait_tag(('st', 0), False)
    g('s_barrier')
    st(3)
    if OPT['tw1']:
        g('v_min_u32 v%d, 55, v%d' % (t0, L))
        g('v_lshrrev_b32 v%d, 2, v%d' % (t1, t0))
        g('v_mul_u32_u24 v%d, s%d, v%d' % (t1, sT4, t1))
        g('v_and_b32 v%d, 3, v%d' % (t0, t0))
        g('v_lshl_add_u32 v%d, v%d, 7, v%d' % (t0, t0, t1))
        g('buffer_load_dword v26, v%d, s[%d:%d], s%d offen' % (t0, S1, S1 + 3, sIDX))

    M = []
    def tr(base, off): return [('ds_read_b64_tr_b16', 0, base, off[0]), ('ds_read_b64_tr_b16', 2, base, off[1])]
    idx = {}
    for s in range(14):
        bs, so = slot_off(s)
        for tt in range(2):
            t = 2 * s + tt
            idx[('p1', t)] = len(M)
            mq = []; mg = []
            for n in range(8):
                o = so + tt * 8192 + (n >> 2) * 256
                mq.append((s, tr(VB[bs][n & 3], (o, o + 2048)),
                          lambda af, n=n, t=t: MF(ar(16 * n, 16), vr(af, 4), vr(X + 4 * t, 4), ar(16 * n, 16) if t else '0')))
            for n in range(7):
                o = so + 16384 + 16 * tt * 224 + 32 * n
                mg.append((s, tr(VG[bs], (o, o + 4 * 224)),
                          lambda af, n=n, t=t: MF(ar(128 + 16 * n, 16), vr(af, 4), vr(X + 4 * t, 4), ar(128 + 16 * n, 16) if t else '0')))
            M += (mg + mq) if t == 27 else (mq + mg)
    kyp = len(M); idx['yp'] = kyp
    order = [(ct, ks) for ks in range(7) for ct in range(3)] + [(ct, ks) for ct in range(3, 14) for ks in range(7)]
    yfirst = {}; ylast = {}; hfirst = {}
    for ct, ks in order:
        s = 14 + ct // 4; bs, so = slot_off(s)
        o = so + ((ct >> 1) & 1) * 16384 + ks * 2048
        acc = YB[ct & 3]
        yfirst.setdefault(ct, len(M)); ylast[ct] = len(M); hfirst.setdefault(ks, len(M))
        M.append((s, tr(OB[bs][ct & 1], (o, o + 512)),
                  lambda af, acc=acc, ks=ks: MF(vr(acc, 16), vr(af, 4), vr(HF[ks], 4), vr(acc, 16) if ks else '0')))
    A0S = 18
    def add_qk(j):
        s = A0S + j; bs, so = slot_off(s); S = SB[j & 1]
        idx[('qk', j)] = len(M)
        for t in range(16):
            c = vr(S, 16) if t else ('0' if j < 2 else vr(NEGM, 16))
            M.append((s, [('ds_read_b128', 0, KB[bs][t & 7], so + (t >> 3) * 256)],
                      lambda af, t=t, S=S, c=c: MF(vr(S, 16), vr(af, 4), vr(Q + 4 * t, 4), c)))
    def add_pv(j):
        s = A0S + 1 + j; bs, so = slot_off(s)
        idx[('pv', j)] = len(M)
        for tt in range(2):
            for n in range(8):
                o = so + 16384 + tt * 8192 + (n >> 2) * 256
                c = '0' if (j == 0 and tt == 0) else ar(16 * n, 16)
                M.append((s, tr(VB[bs][n & 3], (o, o + 2048)),
                          lambda af, n=n, tt=tt, c=c: MF(ar(16 * n, 16), vr(af, 4), vr(PB[tt], 4), c)))
    add_qk(0)
    for j in range(15):
        add_qk(j + 1); add_pv(j)
    add_pv(15)
    for u in range(7):
        s = 35 + u; bs, so = slot_off(s)
        idx[('op', u)] = len(M)
        for t in range(16):
            for n in range(2):
                o = so + t * 2048
                acc = SACC[u & 1] + 16 * n
                M.append((s, tr(OB[bs][n], (o, o + 512)),
                          lambda af, acc=acc, t=t: MF(vr(acc, 16), vr(af, 4), vr(OF + 4 * t, 4), vr(acc, 16) if t else '0')))
    kt = len(M); o0 = idx[('op', 0)]
    def yq(i): return 128 + (64 + 4 * i) % 128
    for i in range(32):
        M.append((41, [], lambda af, i=i: MF(vr(YACC, 16), vr(IA[i & 1], 4), ar(yq(i), 4), vr(YACC, 16) if i else '0')))
    for i in range(32):
        M.append((41, [], lambda af, i=i: MF(vr(SA, 16), vr(IA[i & 1], 4), ar(4 * i, 4), vr(SA, 16) if i else '0')))
    NM = len(M)
    gaps = [[] for _ in range(NM + 1)]
    first = {}; last = {}
    for k, m in enumerate(M):
        first.setdefault(m[0], k); last[m[0]] = k
    bar_at = {}
    for s in range(NST - 1):
        bar_at[last[s] + 1 - OPT['barpos']] = s
    for t in range(27):
        k0 = idx[('p1', t)]
        spread(gaps, norm_items(t + 1), k0, k0 + 13)
    TA_, TB_, TD_ = 24, 25, 26
    def touch(n, srdn, so, flags=''):
        return ['v_min_u32 v%d, %d, v%d' % (TA_, (n - 1) * 16, VL16),
                'v_lshl_add_u32 v%d, v%d, 3, v%d' % (TA_, TA_, TB_),
                ('raw', 'buffer_load_dword v%d, v%d, s[%d:%d], %s offen%s' % (TD_, TA_, srdn, srdn + 3, so, flags))]
    if OPT['twd'] >= 0:
        gaps[idx[('p1', OPT['twd'])] + 3] += ['s_lshl_b32 s%d, s%d, 2' % (sT0, sRT), 's_add_u32 s%d, s%d, s%d' % (sT0, sT0, sW), 's_mul_i32 s%d, s%d, 1568' % (sT0, sT0),
                     's_mul_i32 s%d, s%d, %d' % (sT1, sH, 112 * 896), 's_add_u32 s%d, s%d, s%d' % (sT0, sT0, sT1),
                     'v_mov_b32 v%d, 0' % TB_] + touch(13, SWD, 's%d' % sT0)
    if OPT['tkv'] >= 0:
        gaps[idx[('p1', OPT['tkv'])] + 3] += ['s_lshl_b32 s%d, s%d, 1' % (sT0, sRT), 's_and_b32 s%d, s%d, 1' % (sT1, sH), 's_add_u32 s%d, s%d, s%d' % (sT0, sT0, sT1),
                     's_lshl_b32 s%d, s%d, 1' % (sT0, sT0), 's_and_b32 s%d, s%d, 1' % (sT1, sW), 's_add_u32 s%d, s%d, s%d' % (sT0, sT0, sT1),
                     's_lshl_b32 s%d, s%d, 12' % (sT0, sT0), 's_lshl_b32 s%d, s%d, 20' % (sT1, sKVH), 's_add_u32 s%d, s%d, s%d' % (sT0, sT0, sT1),
                     'v_mov_b32 v%d, 0x%x' % (TB_, 1536 * 512)] + touch(32, SKV, 's%d' % sT0)
    if OPT['two'] >= 0:
        gaps[idx[('qk', OPT['two'])] + 3] += ['s_lshl_b32 s%d, s%d, 2' % (sT0, sRT), 's_add_u32 s%d, s%d, s%d' % (sT0, sT0, sW), 's_mul_i32 s%d, s%d, 3584' % (sT0, sT0),
                     's_mul_i32 s%d, s%d, %d' % (sT1, sH, 256 * 896), 's_add_u32 s%d, s%d, s%d' % (sT0, sT0, sT1),
                     'v_mov_b32 v%d, 0' % TB_] + touch(28, SWO, 's%d' % sT0)
    def conv_items(dst, t, tmp):
        its = []
        base = 16 * (t >> 1) + 8 * (t & 1)
        for d in range(4):
            a, b = tmp[2 * (d & 1)], tmp[2 * (d & 1) + 1]
            its += ['v_accvgpr_read_b32 v%d, a%d' % (a, base + 2 * d),
                    'v_accvgpr_read_b32 v%d, a%d' % (b, base + 2 * d + 1),
                    'v_cvt_pk_bf16_f32 v%d, v%d, v%d' % (dst + 4 * t + d, a, b)]
        return its
    def h_items(n):
        its = []
        base = 128 + 16 * n
        for d in range(4):
            a, b, c, e = T[4 * (d & 1):4 * (d & 1) + 4]
            its += ['v_accvgpr_read_b32 v%d, a%d' % (a, base + 2 * d), 'v_accvgpr_read_b32 v%d, a%d' % (b, base + 8 + 2 * d),
                    'v_accvgpr_read_b32 v%d, a%d' % (c, base + 2 * d + 1), 'v_accvgpr_read_b32 v%d, a%d' % (e, base + 8 + 2 * d + 1),
                    'v_mul_f32 v%d, v%d, v%d' % (a, a, b), 'v_mul_f32 v%d, v%d, v%d' % (c, c, e),
                    'v_cvt_pk_bf16_f32 v%d, v%d, v%d' % (HF[n] + d, a, c)]
        return its
    direct = [int(x) for x in str(OPT['direct']).split(',')]
    parked = [ct for ct in range(14) if ct not in direct]
    assert len(parked) <= 8
    def yst(src, ct, q):
        return ('seq', ['s_add_u32 s%d, s%d, %d' % (sT0, sYP, (ct >> 1) * 4096),
                ('y', 'buffer_store_dwordx4 %s, v%d, s[%d:%d], s%d offen offset:%d%s' % (src, VL16, SWS, SWS + 3, sT0, (ct & 1) * 2048 + q * 1024, STF))])
    def yepi(ct):
        acc = YB[ct & 3]; its = []
        for d in range(8):
            if ct in direct:
                its.append('v_cvt_pk_bf16_f32 v%d, v%d, v%d' % (acc + d, acc + 2 * d, acc + 2 * d + 1))
                if d & 3 == 3: its.append(yst(vr(acc + d - 3, 4), ct, d >> 2))
            else:
                its += ['v_cvt_pk_bf16_f32 v%d, v%d, v%d' % (T[4 + (d & 3)], acc + 2 * d, acc + 2 * d + 1)]
                if d & 1: its += ['v_accvgpr_write_b32 a%d, v%d' % (128 + 8 * parked.index(ct) + d - 1, T[4 + ((d - 1) & 3)]),
                                  'v_accvgpr_write_b32 a%d, v%d' % (128 + 8 * parked.index(ct) + d, T[4 + (d & 3)])]
        return its
    k27 = idx[('p1', 27)]; kq0 = idx[('qk', 0)]
    qh = [(k27 + n + 2, hfirst[n], x) for n in range(7) for x in h_items(n)]
    def ydead(ct): return yfirst[ct + 4] if ct + 4 < 14 else (kq0 if (ct & 3) == 0 else idx[('qk', 1)] if (ct & 3) == 1 else idx[('qk', 1)] + 5)
    qe = [(ylast[ct] + 2, ydead(ct), x) for ct in range(14) for x in yepi(ct)]
    qq = [(kyp + 2, kq0 + t, x) for t in range(16) for x in conv_items(Q, t, T[0:4])]
    k = k27
    while qh or qe or qq:
        n = OPT['vq'] + (1 if qh else 0)
        while n > 0 or (qh and qh[0][1] <= k + 1) or (qe and qe[0][1] <= k + 1) or (qq and qq[0][1] <= k + 1):
            q_ = None
            if qh: q_ = qh if qh[0][0] <= k else None
            elif qq and qq[0][1] <= k + 2: q_ = qq
            elif qe and qe[0][0] <= k: q_ = qe
            elif qq: q_ = qq
            if not q_: break
            e, dl, x = q_.pop(0)
            assert e <= k < dl, (e, k, dl, x)
            gaps[k].append(x); n -= 1
        k += 1
    sys.stderr.write('conv sched ends at qk0%+d\n' % (k - kq0))
    kk = kq0 + 12
    for ct in parked:
        for q in range(2):
            gaps[kk].append(yst(ar(128 + 8 * parked.index(ct) + 4 * q, 4), ct, q)); kk += OPT['ypace']
    def exp_items(S, lo, P, sub=False):
        its = []
        for i in range(lo, lo + 8, 2):
            if sub:
                its += ['v_sub_f32 v%d, v%d, v%d' % (S + i, S + i, VMX), 'v_sub_f32 v%d, v%d, v%d' % (S + i + 1, S + i + 1, VMX)]
            its += ['v_exp_f32 v%d, v%d' % (S + i, S + i), 'v_exp_f32 v%d, v%d' % (S + i + 1, S + i + 1),
                    'v_add_f32 v%d, v%d, v%d' % (VL, VL, S + i), 'v_add_f32 v%d, v%d, v%d' % (VL, VL, S + i + 1),
                    'v_cvt_pk_bf16_f32 v%d, v%d, v%d' % (P + (i - lo) // 2, S + i, S + i + 1)]
        return its
    def max_items(S, dst):
        its = ['v_max3_f32 v%d, v%d, v%d, v%d' % (dst, S, S + 1, S + 2)]
        for i in range(3, 15, 2):
            its.append('v_max3_f32 v%d, v%d, v%d, v%d' % (dst, dst, S + i, S + i + 1))
        its.append('v_max_f32 v%d, v%d, v%d' % (dst, dst, S + 15))
        return its
    assert k <= idx[('qk', 1)] + 2
    vccbusy = set()
    for j in range(16):
        S = SB[j & 1]
        kb = idx[('pv', j)]
        if j == 0:
            ka = idx[('qk', 1)]
            its = max_items(S, VMX) + ['v_mov_b32 v%d, v%d' % (T[4], VMX), 'v_permlane32_swap_b32 v%d, v%d' % (VMX, T[4]),
                                       'v_max_f32 v%d, v%d, v%d' % (VMX, VMX, T[4])]
            spread(gaps, its, ka + 2, ka + 5)
            spread(gaps, exp_items(S, 0, PB[0], True), ka + 6, ka + 14)
            spread(gaps, exp_items(S, 8, PB[1], True), ka + 15, kb + 6)
            its = ['v_sub_f32 v%d, v%d, v%d' % (SB[1] + i, SB[1] + i, VMX) for i in range(16)]
            its += ['v_sub_f32 v%d, 0, v%d' % (NEGM + i, VMX) for i in range(16)]
            spread(gaps, its, kb + 3, kb + 11)
            spread(gaps, max_items(SB[1], T[5]), kb + 12, kb + 14)
        elif j < 15:
            ka = idx[('qk', j + 1)]
            spread(gaps, exp_items(S, 0, PB[0]), ka, ka + 9)
            spread(gaps, exp_items(S, 8, PB[1]), ka + 10, kb + 5)
            spread(gaps, max_items(SB[(j + 1) & 1], T[5]), kb + 6, kb + 14)
        else:
            gaps[kb - 1] += exp_items(S, 0, PB[0])
            spread(gaps, exp_items(S, 8, PB[1]), kb, kb + 6)
        if j < 15:
            gaps[kb + 14].append('v_cmp_lt_f32 vcc, s%d, v%d' % (sTHR, T[5]))
            gaps[kb + 15].insert(0, ('rare', j + 1))
            vccbusy.add(kb + 14)
    def vok(k): return k + 1 if k in vccbusy else k
    k5 = idx[('qk', 3)]
    its = ['v_mov_b32 v%d, 0' % VPOLL, 'buffer_load_dword v%d, v%d, s[%d:%d], 0 offen sc1' % (VNON, VPOLL, SDBG, SDBG + 3),
           'v_lshrrev_b32 v%d, 4, v%d' % (T[6], VL16),
           'v_cmp_gt_u32 vcc, %d, v%d' % (OPT.get('fw', 32), T[6]),
           'v_mov_b32 v%d, 0x%x' % (T[7], OOB),
           'v_lshlrev_b32 v%d, 2, v%d' % (T[8], T[6]),
           'v_and_b32 v%d, 15, v%d' % (VFL, T[6]),
           'v_cndmask_b32 v%d, v%d, v%d, vcc' % (VFO, T[7], T[8]),
           'v_mul_u32_u24 v%d, %d, v%d' % (VFL, FST, VFL),
           'v_and_b32 v%d, 31, v%d' % (T[7], T[6]), 'v_mul_u32_u24 v%d, 896, v%d' % (T[7], T[7]),
           'v_and_b32 v%d, 32, v%d' % (T[8], T[6]), 'v_add_u32 v%d, v%d, v%d' % (VXO, T[7], T[8])]
    spread(gaps, its, k5, k5 + 12)
    kp = vok(kk - OPT['ypace'] + OPT['ypd'])
    assert kp > k5 + 40
    gaps[kp] += [('nonce',), ('waittag', 'y'), 'buffer_store_dword v%d, v%d, s[%d:%d], s%d offen sc1' % (VNON, VFO, SWS, SWS + 3, sFP)]
    gaps[kp + OPT['yfl']] += ['buffer_load_dword v%d, v%d, s[%d:%d], s%d offen sc1' % (VPOLL, VFL, SWS, SWS + 3, sFC)]
    kq = vok(kp + OPT['yfl'] + OPT['ychk'])
    sys.stderr.write('ypub at iter %.1f, ychk at iter %.1f\n' % ((kp - kq0 - 16) / 32, (kq - kq0 - 16) / 32))
    gaps[kq] += [('poll', 'h', 0)]
    def pl(dst, so, off): return 'buffer_load_dwordx4 %s, v%d, s[%d:%d], s%d offen offset:%d sc1' % (ar(dst, 4), VL16, SWS, SWS + 3, so, off)
    lo, hi = kq + 1, o0 + OPT['yend']
    for i in range(32):
        gaps[lo + i * (hi - lo) // 32] += [pl(yq(i), sYB, (i & 1) * 1024)] + (['s_add_u32 s%d, s%d, %d' % (sYB, sYB, HS)] if i & 1 else [])
    g0 = idx[('pv', 15)] + 10
    its = [x for t in range(16) for x in conv_items(OF, t, T[0:4])]
    quota(gaps, its[:48], g0, 8)
    quota(gaps, its[48:], g0 + 6, 6)
    gaps[o0 + 26] += ['v_mov_b32 v%d, v%d' % (T[4], VL), 'v_mov_b32 v%d, v%d' % (T[5], VL)]
    gaps[o0 + 27] += ['v_permlane32_swap_b32 v%d, v%d' % (T[4], T[5])]
    gaps[o0 + 28] += ['v_add_f32 v%d, v%d, v%d' % (T[4], T[4], T[5])]
    gaps[o0 + 29] += ['v_rcp_f32 v%d, v%d' % (VRI, T[4])]
    its = ['s_lshr_b32 s%d, s%d, 1' % (sT1, sCT), 's_add_u32 s%d, s%d, 21' % (sT1, sT1),
           'v_bfe_u32 v%d, v%d, 4, 4' % (T[8], VL16),
           'v_sub_u32 v%d, s%d, v%d' % (VSTEP, sT1, T[8]),
           'v_mul_u32_u24 v%d, 37, v%d' % (VNEED, VSTEP),
           'v_lshrrev_b32 v%d, 8, v%d' % (VNEED, VNEED),
           'v_mul_u32_u24 v%d, 7, v%d' % (VNEED, VNEED),
           'v_sub_u32 v%d, v%d, v%d' % (VSTEP, VSTEP, VNEED),
           'v_add3_u32 v%d, v%d, v%d, 1' % (VNEED, VSTEP, VNON),
           's_add_u32 s%d, s%d, 128' % (sFC, sFC), 's_add_u32 s%d, s%d, 128' % (sFP, sFP)]
    spread(gaps, its, o0 + 48, o0 + 60)
    its = ['v_lshrrev_b32 v%d, 4, v%d' % (T[6], VL16),
           'v_lshrrev_b32 v%d, 3, v%d' % (T[7], T[6]),
           'v_xor_b32 v%d, v%d, v%d' % (T[7], T[7], T[6]),
           'v_and_b32 v%d, 4, v%d' % (T[7], T[7]),
           'v_lshlrev_b32 v%d, 1, v%d' % (T[7], T[7]),
           'v_bfe_u32 v%d, v%d, 3, 2' % (T[8], T[6]),
           'v_lshl_or_b32 v%d, v%d, 1, v%d' % (T[7], T[8], T[7]),
           'v_bfe_u32 v%d, v%d, 1, 1' % (T[8], T[6]),
           'v_or_b32 v%d, v%d, v%d' % (T[7], T[7], T[8]),
           'v_and_b32 v%d, 1, v%d' % (T[8], T[6]),
           'v_lshlrev_b32 v%d, 4, v%d' % (T[8], T[8]),
           'v_mov_b32 v%d, 0x3f80' % T[6],
           'v_lshlrev_b32 v%d, v%d, v%d' % (T[8], T[8], T[6])]
    for d in range(8):
        its += [('seq', ['v_cmp_eq_u32 vcc, %d, v%d' % (d, T[7]), 'v_cndmask_b32 v%d, 0, v%d, vcc' % (IA[0] + d, T[8])])]
    spread(gaps, its, o0 + 80, o0 + 94)
    def epi_items(u):
        its = []
        for n in range(2):
            acc = SACC[u & 1] + 16 * n
            for q in range(2):
                for d in range(4):
                    i = acc + 8 * q + 2 * d
                    its += ['v_mul_f32 v%d, v%d, v%d' % (i, i, VRI), 'v_mul_f32 v%d, v%d, v%d' % (i + 1, i + 1, VRI),
                            'v_cvt_pk_bf16_f32 v%d, v%d, v%d' % (ST + 8 * n + 4 * q + d, i, i + 1)]
                its.append(('tag', ('s', u), 'buffer_store_dwordx4 %s, v%d, s[%d:%d], s%d offen offset:%d%s' % (vr(ST + 8 * n + 4 * q, 4), VL16, SWS, SWS + 3, sSP, n * 2048 + q * 1024, STF)))
        if u < 6:
            its += [('seq', ['s_add_u32 s%d, s%d, 4096' % (sSP, sSP), 's_cmp_eq_u32 s%d, s%d' % (sSP, sSPE),
                    's_cselect_b32 s%d, 28672, 0' % sT0, 's_sub_u32 s%d, s%d, s%d' % (sSP, sSP, sT0)])]
        return its
    gaps[kt - 1].append(('noty',))
    spub = 'buffer_store_dword v%d, v%d, s[%d:%d], s%d offen sc1' % (VNON, VFO, SWS, SWS + 3, sFP)
    def sfl(u): return 'buffer_load_dword v%d, v%d, s[%d:%d], s%d offen sc1' % (VP2[u & 1], VFL, SWS, SWS + 3, sFC)
    LS = {k: [o0 + int(x) for x in str(OPT[k]).split(',')] for k in ('pub', 'fl', 'chk')}
    npub_pre = 0
    for u in range(7):
        k0 = o0 + 32 * (u + 1)
        spread(gaps, epi_items(u), k0 + (1 if u < 6 else 0), k0 + (OPT['epw'] if u < 6 else 6))
        if LS['pub'][u] < kt: npub_pre += 1
        gaps[LS['pub'][u]] += ['v_add_u32 v%d, 1, v%d' % (VNON, VNON), ('waittag', ('s', u)), spub]
    def rdy(vp): return ['v_sub_u32 v%d, v%d, v%d' % (vp, vp, VNEED), 'v_cmp_ge_u32 vcc, 7, v%d' % vp, 's_and_b32 s%d, vcc_lo, s%d' % (sRDY, sPEND)]
    def take(r0, r1):
        return ['s_ff1_i32_b32 s%d, s%d' % (sHA, sRDY), 's_bitset0_b32 s%d, s%d' % (sRDY, sHA), 's_bitset0_b32 s%d, s%d' % (sPEND, sHA),
                's_min_u32 s%d, s%d, 255' % (sHA, sHA), 's_mul_i32 s%d, s%d, %d' % (sHA, sHA, HS), 's_add_u32 s%d, s%d, s%d' % (sHA, sHA, sPB)] + \
               ['buffer_load_dwordx4 %s, v%d, s[%d:%d], s%d offen offset:%d sc1' % (r, VL16, SWS, SWS + 3, sHA, o) for r, o in ((r0, 0), (r1, 1024))]
    nfl = 0
    for gi in range(4):
        kl = LS['chk'][gi]
        if LS['fl'][gi] > o0:
            nfl += 1
            gaps[LS['fl'][gi]] += [sfl(nfl)]
            gaps[kl] += rdy(VP2[nfl & 1])
        for j in range(4):
            its = take(ar(32 * gi + 8 * j, 4), ar(32 * gi + 8 * j + 4, 4))
            if kl < kt:
                gaps[kl + 1 + 2 * j] += its[:6]; gaps[kl + 2 + 2 * j] += its[6:]
            else:
                assert kl + j < kt + 32 + 8 * gi + 2 * j
                gaps[kl + j] += its
    gaps[o0 + OPT['flt']] += [sfl(0)]
    ks_ = LS['chk'][-1]
    gaps[o0 + 110] += ['buffer_load_dwordx4 %s, v%d, s[%d:%d], s%d offen' % (vr(XF[0], 4), VXO, SX, SX + 3, sXO),
                       'buffer_load_dwordx4 %s, v%d, s[%d:%d], s%d offen offset:16' % (vr(XF[1], 4), VXO, SX, SX + 3, sXO)]
    Y = YACC; E = 112; XX = 0
    its = ['s_mov_b32 s%d, %s' % (sT3, f2h(KINV)), 's_mov_b32 s%d, %s' % (sT4, f2h(-KINV * math.log2(math.e)))]
    for d in range(8):
        its += ['v_lshlrev_b32 v%d, 16, v%d' % (XX + 2 * d, XF[d >> 2] + (d & 3)), 'v_and_b32 v%d, s%d, v%d' % (XX + 2 * d + 1, sMASK, XF[d >> 2] + (d & 3))]
    spread(gaps, its, kt + 12, kt + 20)
    its = ['v_mul_f32 v%d, s%d, v%d' % (E + i, sT4, Y + i) for i in range(16)]
    its += ['v_exp_f32 v%d, v%d' % (E + i, E + i) for i in range(16)]
    for i in range(16): its += ['v_mul_f32 v%d, s%d, v%d' % (Y + i, sT3, Y + i), 'v_add_f32 v%d, 1.0, v%d' % (E + i, E + i)]
    its += ['v_rcp_f32 v%d, v%d' % (E + i, E + i) for i in range(16)]
    its += ['v_mul_f32 v%d, v%d, v%d' % (Y + i, Y + i, E + i) for i in range(16)]
    spread(gaps, its, kt + 33, kt + 46)

    def emit_reads(k):
        s, rd, fn = M[k]
        assert s in certified, (k, s)
        af = AF[k % PF]
        for mn, w, base, off in rd:
            width = 4 if mn.endswith('b128') else 2
            g('%s %s, v%d offset:%d' % (mn, vr(af + w, width), base, off))
    certified = {0}
    dmaq = dma_items(2) + dma_items(3)
    for k in range(PF): emit_reads(k)
    for s in norm_items(0): g(s)
    since = 0
    stamp_at = {idx[('p1', 14)], kyp, idx[('qk', 0)], idx[('qk', 4)], idx[('qk', 8)], o0, kt}
    if OPT.get('stk'): stamp_at = {o0 + int(x) for x in OPT['stk'].split(',')}
    if OPT.get('stp'): stamp_at = {int(x) for x in OPT['stp'].split(',')}
    stamp4 = {0, idx[('qk', 0)], o0, kt}
    rare_sites = []
    oolines = []
    def spin(name, back, vp, vn, load):
        o = oolines
        o.append('%s:' % name)
        if vn:
            o.append('    s_cmp_lt_u32 s%d, 4' % sI)
            o.append('    s_cbranch_scc1 %s' % back)
        o.append('    s_mov_b32 s%d, 0' % sSPIN)
        o.append('%s_l:' % name)
        o.append('    s_sleep 2')
        o.append('    ' + load)
        o.append('    s_add_u32 s%d, s%d, 1' % (sSPIN, sSPIN))
        o.append('    s_cmp_gt_u32 s%d, %d' % (sSPIN, SPIN_MAX))
        o.append('    s_cbranch_scc1 %s' % back)
        o.append('    s_waitcnt vmcnt(0)')
        for x in (vp if isinstance(vp, list) else [vp]):
            o.append('    ' + x)
            o.append('    s_nop 1')
        o.append('    s_cbranch_vccnz %s_l' % name)
        o.append('    s_branch %s' % back)
    for k in range(NM):
        s, rd, fn = M[k]
        if k in stamp_at: st(1)
        if k in stamp4: st(4); st(4, real=True)
        if k % 2 == 0 and k + 1 < NM:
            a = AF[(k + 1) % PF]
            g.wait_regs(['v%d' % (a + 3), 'v%d' % (a + 1)])
        g(fn(AF[k % PF]))
        if k in bar_at:
            sb = bar_at[k]
            g.wait_tag(('st', sb + 1), False)
            if not (OPT.get('xbar') and sb >= 2): g('s_barrier')
            certified.add(sb + 1)
            if sb + 4 < NST and not (OPT.get('xdma') and sb >= 1): dmaq += dma_items(sb + 4)
            since = OPT['dmaper']
        dma = None
        since += 1
        if dmaq and (since >= (OPT['dmaper'] if k < o0 else OPT['dmo']) or len(dmaq) > 8):
            dma = dmaq.pop(0); since = 0
            if dma[0]: dma[0]()
        if k + PF < NM: emit_reads(k + PF)
        if dma: dma[1]()
        for it in gaps[k]:
            if isinstance(it, str):
                if OPT.get('xvalu') and it.startswith('v_') and (k < k27 - 15 or idx[('qk', 4)] <= k < idx[('pv', 14)]) and 'v_cmp' not in it and ('v%d,' % TA_) not in it and ('v%d,' % TB_) not in it: continue
                g(it); continue
            if it[0] == 'rare':
                j = it[1]
                g('s_cbranch_vccnz L1_tr%d' % j)
                g.label('L1_bk%d' % j)
                rare_sites.append(j)
            elif it[0] == 'tag': g(it[2], tag=it[1])
            elif it[0] == 'raw':
                g('s_nop 0'); g.raw('    ' + it[1]); g.pos += 1; g.vm.append((None, {'v%d' % TD_}, False))
            elif it[0] == 'waittag': g.wait_tag(it[1], False)
            elif it[0] == 'nonce':
                c = 'v_cmp_eq_u32 vcc, 0, v%d' % VNON
                g(c); g('s_nop 1'); g('s_cbranch_vccnz L1_spn'); g.label('L1_spn_b')
                spin('L1_spn', 'L1_spn_b', c, None, 'buffer_load_dword v%d, v%d, s[%d:%d], 0 offen sc1' % (VNON, VPOLL, SDBG, SDBG + 3))
            elif it[0] == 'poll':
                vp, vn = VPOLL, VNON
                c = 'v_cmp_ne_u32 vcc, v%d, v%d' % (vp, vn)
                nm = 'L1_sp' + it[1]
                g(c); g('s_nop 1'); g('s_cbranch_vccnz ' + nm); g.label(nm + '_b')
                spin(nm, nm + '_b', c, True, 'buffer_load_dword v%d, v%d, s[%d:%d], s%d offen sc1' % (vp, VFL, SWS, SWS + 3, sFC))
            elif it[0] == 'seq':
                for x in it[1]: (g(x) if isinstance(x, str) else g(x[1], tag=x[0]))
            elif it[0] == 'noty':
                g('s_cmp_lt_u32 s%d, 4' % sI)
                g('s_cbranch_scc1 L1_noty')
                nst_noty = st.n
    st(1)
    for x in rdy(VP2[0]): g(x)
    g('s_mov_b32 s%d, 0' % sSPIN)
    R = g.raw
    for r in range(16):
        R('    s_cmp_eq_u32 s%d, 0' % sPEND)
        R('    s_cbranch_scc1 L1_sum%d' % r)
        R('L1_r%d:' % r)
        R('    s_cmp_lg_u32 s%d, 0' % sRDY)
        R('    s_cbranch_scc1 L1_g%d' % r)
        R('    ' + sfl(0))
        R('    s_add_u32 s%d, s%d, 1' % (sSPIN, sSPIN))
        R('    s_cmp_gt_u32 s%d, %d' % (sSPIN, SPIN_MAX))
        R('    s_cbranch_scc1 L1_sum%d' % r)
        R('    s_waitcnt vmcnt(0)')
        for x in rdy(VP2[0]): R('    ' + x); R('    s_nop 1')
        R('    s_branch L1_r%d' % r)
        R('L1_g%d:' % r)
        for x in take(vr(128 + 8 * r, 4), vr(132 + 8 * r, 4)): R('    ' + x)
    for r in range(16, -1, -1):
        R('L1_sum%d:' % r)
        if r:
            R('    s_waitcnt vmcnt(0)')
            for q in range(2): R('    ' + MF(vr(SA, 16), vr(IA[q], 4), vr(128 + 8 * (r - 1) + 4 * q, 4), vr(SA, 16)))
    g.vm = []; g.fence()
    g('s_nop 15')
    for i in range(16): g('v_fma_f32 v%d, v%d, v%d, v%d' % (XX + i, Y + i, SA + i, XX + i))
    for d in range(8): g('v_cvt_pk_bf16_f32 v%d, v%d, v%d' % (E + d, XX + 2 * d, XX + 2 * d + 1))
    g('buffer_store_dwordx4 %s, v%d, s[%d:%d], s%d offen' % (vr(E, 4), VXO, SOUT, SOUT + 3, sXO))
    g('buffer_store_dwordx4 %s, v%d, s[%d:%d], s%d offen offset:16' % (vr(E + 4, 4), VXO, SOUT, SOUT + 3, sXO))
    st(5); st(real=True)
    st.dump(g, SWS, 2, STAMP_BASE, T[0])
    g.label('L1_end')
    g('s_endpgm')
    r = Gen()
    r.label('L1_noty')
    r('s_nop 15')
    for it in epi_items(6): r(it if isinstance(it, str) else it[2])
    r('v_add_u32 v%d, %d, v%d' % (VNON, 7 - npub_pre, VNON))
    r.waitall()
    r(spub)
    if OPT['stamp']:
        for i in range(nst_noty, st.n): r('s_memrealtime s[%d:%d]' % (sSTAMP + 2 * i, sSTAMP + 2 * i + 1))
        st.dump(r, SWS, 2, STAMP_BASE, T[0])
    r('s_endpgm')
    g.out += r.out + oolines
    for j in rare_sites:
        g.label('L1_tr%d' % j)
        g.raw('    s_mov_b32 s%d, %d' % (sIDX, j))
        g.raw('    s_branch L1_rare%d' % (j & 1))
    for par in range(2):
        r = Gen()
        S = SB[par]
        r.label('L1_rare%d' % par)
        r('s_nop 15')
        r('v_mov_b32 v%d, v%d' % (T[4], T[5]))
        r('v_permlane32_swap_b32 v%d, v%d' % (T[5], T[4]))
        r('v_max3_f32 v%d, v%d, v%d, 0' % (T[5], T[5], T[4]))
        r('v_exp_f32 v%d, -v%d' % (T[4], T[5]))
        for i in range(16):
            r('v_sub_f32 v%d, v%d, v%d' % (S + i, S + i, T[5]))
            r('v_sub_f32 v%d, v%d, v%d' % (NEGM + i, NEGM + i, T[5]))
        r('v_mul_f32 v%d, v%d, v%d' % (VL, VL, T[4]))
        for i in range(128):
            tt = T[i & 1]
            r('v_accvgpr_read_b32 v%d, a%d' % (tt, i))
            r('v_mul_f32 v%d, v%d, v%d' % (tt, tt, T[4]))
            r('v_accvgpr_write_b32 a%d, v%d' % (i, tt))
        r('s_nop 3')
        js = [j for j in rare_sites if (j & 1) == par]
        for j in js[:-1]:
            r('s_cmp_eq_u32 s%d, %d' % (sIDX, j))
            r('s_cbranch_scc1 L1_bk%d' % j)
        if par: r.label('L1_last')
        r('s_branch L1_bk%d' % js[-1])
        g.out += r.out
    sys.stderr.write('K1: %d mfma, nops %d, counts %s\n' % (NM, g.nnop, g.count))
    return g.out

def main():
    out = []
    hdr = open('cdna_kernels/%s.s.ref' % NAME).read().split('\n')
    for l in hdr:
        if l.startswith('; @launch'): break
        out.append(l)
    nm = NAME + '_kernel'
    out.append('; @launch grid=(256,1,1) block=(256,1,1) lds=163840')
    out.append('.amdgcn_target "amdgcn-amd-amdhsa--gfx950"')
    out.append('.text')
    out += ['.globl %s' % nm, '.p2align 8', '.type %s,@function' % nm]
    out += gen_k1()
    out.append('.section .rodata,"a"')
    out += ['.p2align 6', '.amdhsa_kernel %s' % nm, '  .amdhsa_next_free_vgpr 512', '  .amdhsa_next_free_sgpr 102',
            '  .amdhsa_accum_offset 256', '  .amdhsa_group_segment_fixed_size 0', '  .amdhsa_kernarg_size 96',
            '  .amdhsa_user_sgpr_count 2', '  .amdhsa_user_sgpr_kernarg_segment_ptr 1',
            '  .amdhsa_system_sgpr_workgroup_id_x 1', '.end_amdhsa_kernel']
    open(sys.argv[1], 'w').write('\n'.join(out) + '\n')
main()
```

```python
import sys, struct, math
from asmlib import *

def f2h(x): return '0x%08x' % struct.unpack('<I', struct.pack('<f', x))[0]

NAME = 'recurrent_scan__sliding_block_cached__glu_gated_bilinear__prompt'
OPT = dict(stamp=0, tcode=1, grp='x0123456', pf=6, dmaper=3, barpos=8, hx=2, wsoff=0, tw1=1, tw0=5, xa=4, tx=0, slp=0, pmask=1, thin=3, ndp=4, twd=6, tkv=16, two=9, epw=12, dmo=1, vq=6,
           direct='0,1,2,5,8,11', ypace=11, ypd=40, yfl=20, ychk=90, yend=0,
           pub='110,142,174,206,222,232,233', fl='231,0,0,0', chk='234,238,242,246', flt=250, fst=256)
for a in sys.argv[2:]:
    k, v = a.split('=')
    OPT[k] = int(v) if v.lstrip('-').isdigit() else v
STF = {0: ' sc1', 1: '', 2: ' sc0 sc1', 3: ' sc1 nt', 4: ' nt'}[OPT.get('stf', 0)]

DFL = {0: '', 1: ' nt', 2: ' sc1', 3: ' sc0', 4: ' sc0 sc1'}[OPT.get('dfl', 0)]
CS = math.log2(math.e) / 16.0
KINV = 1.0 / (CS * CS)
SP_BASE = OPT['wsoff'] << 20
YP_OFF = 0x1C00000
FL_BASE = SP_BASE + 0x3800000
STAMP_BASE = 0x3E00000
FST = OPT.get('fst', 4352)
WS_SIZE = 268435456
OOB = 0x40000000
TTHR = 24.0
SPIN_MAX = 1 << 17

PF = OPT['pf']
AF = [4 * i for i in range(PF)]
DV1 = list(range(28, 36)); DV2 = list(range(36, 44)); DV3 = list(range(44, 52))
VB = [[52 + 4 * s + i for i in range(4)] for s in range(3)]
VG = [64, 65, 66]
OB = [[67 + 2 * s + i for i in range(2)] for s in range(3)]
KB = [[73 + 8 * s + i for i in range(8)] for s in range(3)]
VL16 = 97; VL = 98; VA = 99; VBB = 100; VMX = 101; VRI = 102
VFO = 99; VFL = 100
T = list(range(103, 112))
NEGM = 112; ST = 112
X = 128; Q = 128; SB = [192, 208]; PB = [224, 228]
VNON = 28; VPOLL = 29; VP2 = [30, 31]; VNEED = 32; VSTEP = 33; VXO = 101
OF = 128; SACC = [192, 224]
HF = [24, 28, 32, 112, 116, 120, 124]; YB = [192, 208, 224, 240]
YACC = 76; SA = 36; XF = [60, 92]; IA = [52, 56]
HS = 64 * 28672
SX, S1, SKV, SWO, SWD, SWS, SDBG, SOUT = 28, 32, 36, 40, 44, 48, 4, 8
sW, sH, sRT, sKVH, sO1, sST1, sOKV, sOWO, sQB = 52, 53, 54, 55, 56, 57, 58, 59, 60
sT0, sT1, sT2, sONE, sMASK, sTHR, sIDX, sSP, sYP, sAD3, sT3, sT4 = 61, 62, 63, 64, 65, 66, 67, 68, 69, 70, 71, 72
sI, sCT, sRO, sOWD, sFP, sFC, sYB, sPB, sXO, sNON, sSPIN = 12, 13, 14, 15, 16, 17, 18, 19, 20, 21, 22
sWOE, sSPE, sPEND = 23, 24, 25
sRDY, sHA = 26, 27
sTC, sTS, sTI, sRL = 73, 100, 101, 3
sSTAMP = 76
CL = 5
NST = 42

def slot_off(stage):
    s = stage % 5
    return s // 2, (s % 2) * 32768

def srd(g, d, p, size):
    g('s_mov_b32 s%d, s%d' % (d, p))
    g('s_and_b32 s%d, s%d, 0xffff' % (d + 1, p + 1))
    g('s_mov_b32 s%d, 0x%x' % (d + 2, size))
    g('s_mov_b32 s%d, 0x20000' % (d + 3))

class Stamper:
    def __init__(self, g): self.g = g; self.n = 0
    def __call__(self, lvl=3, real=False):
        if real and lvl == 3: lvl = 7
        if (OPT['stamp'] & lvl) and self.n < 12:
            self.g('%s s[%d:%d]' % ('s_memrealtime' if (real or OPT.get('real')) else 's_memtime', sSTAMP + 2 * self.n, sSTAMP + 2 * self.n + 1))
            self.n += 1
    def dump(self, g, srdn, wgs, base, vt):
        if not OPT['stamp']: return
        g.waitall()
        g('s_lshl_b32 s%d, s%d, 2' % (sT0, wgs))
        g('s_add_u32 s%d, s%d, s%d' % (sT0, sT0, sW))
        g('s_lshl_b32 s%d, s%d, 6' % (sT0, sT0))
        g('s_add_u32 s%d, s%d, 0x%x' % (sT0, sT0, base))
        g('v_mov_b32 v%d, 0' % (vt + 1))
        for i in range(self.n):
            g('v_mov_b32 v%d, s%d' % (vt, sSTAMP + 2 * i))
            g('buffer_store_dword v%d, v%d, s[%d:%d], s%d offen offset:%d' % (vt, vt + 1, srdn, srdn + 3, sT0, 4 * i))
            g('s_nop 1')

def spread(gaps, items, lo, hi):
    n = hi - lo + 1
    m = len(items)
    for i, it in enumerate(items):
        gaps[lo + (i * n) // m].append(it)

def quota(gaps, items, lo, q):
    for i, it in enumerate(items):
        gaps[lo + i // q].append(it)

def MF(d, a, b, c): return 'v_mfma_f32_32x32x16_bf16 %s, %s, %s, %s' % (d, a, b, c)

def gen_k1():
    g = Gen(); st = Stamper(g)
    KN = NAME + '_kernel'
    g.label(KN)
    g('s_cmp_ge_u32 s2, 256')
    g('s_cbranch_scc1 L1_end')
    st(7); st(real=True)
    g('s_load_dwordx16 s[4:19], s[0:1], 0')
    g('s_load_dwordx8 s[20:27], s[0:1], 64')
    L, N, HH, R_, C_, GP, SW = 240, 241, 242, 243, 244, 245, 249
    t0, t1, t2, t3, t4 = 250, 251, 252, 253, 254
    XV = T[0:4]
    g('v_lshrrev_b32 v%d, 6, v0' % t0)
    g('v_and_b32 v%d, 63, v0' % L)
    g('v_readfirstlane_b32 s%d, v%d' % (sW, t0))
    HX = OPT['hx']; lhx = HX.bit_length() - 1
    ng = 16 // HX
    g('s_and_b32 s%d, s2, 7' % sT0)
    g('s_lshr_b32 s%d, s2, 3' % sT1)
    g('s_and_b32 s%d, s%d, %d' % (sT2, sT0, ng - 1))
    g('s_lshl_b32 s%d, s%d, %d' % (sH, sT2, lhx))
    g('s_and_b32 s%d, s%d, %d' % (sT2, sT1, HX - 1))
    g('s_add_u32 s%d, s%d, s%d' % (sH, sH, sT2))
    g('s_lshr_b32 s%d, s%d, %d' % (sT2, sT0, 4 - lhx))
    g('s_lshl_b32 s%d, s%d, %d' % (sRT, sT2, 5 - lhx))
    g('s_lshr_b32 s%d, s%d, %d' % (sT2, sT1, lhx))
    g('s_add_u32 s%d, s%d, s%d' % (sRT, sRT, sT2))
    g('s_lshr_b32 s%d, s%d, 1' % (sKVH, sH))
    g('s_lshl_b32 s%d, s%d, 13' % (sQB, sW))
    g('s_lshl_b32 s%d, s%d, 2' % (sT3, sRT))
    g('s_add_u32 s%d, s%d, s%d' % (sT3, sT3, sW))
    g('s_mul_i32 s%d, s%d, %d' % (sT4, sT3, 32 * 896))
    g('v_lshrrev_b32 v%d, 3, v%d' % (t0, L))
    g('v_and_b32 v%d, 7, v%d' % (t1, L))
    g('v_lshrrev_b32 v%d, 4, v%d' % (t2, L))
    g('v_xor_b32 v%d, v%d, v%d' % (t1, t1, t2))
    g('v_mul_u32_u24 v%d, 896, v%d' % (t0, t0))
    g('v_lshl_add_u32 v%d, v%d, 4, v%d' % (XV[0], t1, t0))
    g('v_xor_b32 v%d, 64, v%d' % (t1, XV[0]))
    g('v_add_u32 v%d, %d, v%d' % (XV[2], 2 * (7168 - 1024), XV[0]))
    g('v_add_u32 v%d, %d, v%d' % (XV[1], 7168 - 1024, t1))
    g('v_add_u32 v%d, %d, v%d' % (XV[3], 3 * (7168 - 1024), t1))
    if OPT['tcode']:
        g('s_getpc_b64 s[74:75]')
        g.label('L1_pc')
        g('s_lshl_b32 s%d, s%d, 2' % (sT2, sT1))
        g('s_add_u32 s%d, s%d, s%d' % (sT2, sT2, sW))
        g('s_mul_i32 s%d, s%d, %d' % (sT2, sT2, CL * 128))
        g('v_min_u32 v%d, %d, v%d' % (t3, CL - 1, L))
        g('v_lshlrev_b32 v%d, 7, v%d' % (t3, t3))
        g('v_add_u32 v%d, s%d, v%d' % (t3, sT2, t3))
        g('v_min_u32 v%d, L1_last-L1_pc, v%d' % (t3, t3))
        g('v_mov_b32 v25, s75')
        g('v_add_co_u32 v24, vcc, s74, v%d' % t3)
        g('v_addc_co_u32 v25, vcc, 0, v25, vcc')
        g('global_load_dword v27, v[24:25], off')
    st(2)
    g('s_waitcnt lgkmcnt(0)')
    st(2)
    srd(g, SX, 4, 2048 * 896)
    if OPT['tx']:
        g('v_lshrrev_b32 v%d, 1, v%d' % (t0, L))
        g('v_mul_u32_u24 v%d, 896, v%d' % (t0, t0))
        g('v_and_b32 v%d, 1, v%d' % (t1, L))
        g('v_lshl_add_u32 v%d, v%d, 7, v%d' % (t0, t1, t0))
        for i in range(OPT['tx']):
            g('s_nop 0'); g.raw('    buffer_load_dword v26, v%d, s[%d:%d], s%d offen offset:%d' % (t0, SX, SX + 3, sT4, 640 - 256 * i)); g.pos += 1; g.vm.append((None, {'v26'}, False))
    g('s_cmp_eq_u32 s%d, 2' % sW)
    g('s_cselect_b32 s%d, s16, s18' % S1)
    g('s_cselect_b32 s%d, s17, s19' % (S1 + 1))
    g('s_and_b32 s%d, s%d, 1' % (sT0, sH))
    g('s_mul_i32 s%d, s%d, 448' % (sTC, sKVH))
    g('s_and_b32 s%d, s%d, 0xffffff80' % (sTC, sTC))
    g('s_lshl_b32 s%d, s%d, 9' % (sT1, sH))
    g('s_mov_b32 s%d, 0x%x' % (S1 + 2, 448 * 3584))
    g('s_mov_b32 s%d, 3584' % sTS)
    g('s_cmp_lt_u32 s%d, 2' % sW)
    g('s_cselect_b32 s%d, s10, s%d' % (S1, S1))
    g('s_cselect_b32 s%d, s11, s%d' % (S1 + 1, S1 + 1))
    g('s_cselect_b32 s%d, 0x%x, s%d' % (S1 + 2, 448 * 8192, S1 + 2))
    g('s_cselect_b32 s%d, 8192, s%d' % (sTS, sTS))
    g('s_cselect_b32 s%d, s%d, s%d' % (sTC, sT1, sTC))
    g('s_cselect_b32 s%d, s%d, s%d' % (sT0, sW, sT0))
    g('s_and_b32 s%d, s%d, 0xffff' % (S1 + 1, S1 + 1))
    g('s_mov_b32 s%d, 0x20000' % (S1 + 3))
    F = HX // 2
    g('s_and_b32 s%d, s%d, %d' % (sRL, sRT, 16 // F - 1))
    g('s_lshl_b32 s%d, s%d, 1' % (sTI, sRL))
    g('s_add_u32 s%d, s%d, s%d' % (sTI, sTI, sT0))
    def wtouch(row0, nrow):
        nrow *= F
        if nrow > 16:
            a_ = nrow // F // 2
            wtouch(row0, a_); wtouch(row0 + 32 * a_, nrow // F - a_)
            return
        g('s_mul_i32 s%d, s%d, %d' % (sT0, sTI, nrow))
        g('s_add_u32 s%d, s%d, %d' % (sT0, sT0, row0))
        g('v_min_u32 v%d, %d, v%d' % (t0, 4 * nrow - 1, L))
        g('v_lshrrev_b32 v%d, 2, v%d' % (t1, t0))
        g('v_add_u32 v%d, s%d, v%d' % (t1, sT0, t1))
        g('v_mul_u32_u24 v%d, s%d, v%d' % (t1, sTS, t1))
        g('v_and_b32 v%d, 3, v%d' % (t0, t0))
        g('v_lshl_add_u32 v%d, v%d, 7, v%d' % (t0, t0, t1))
        g('s_nop 0'); g.raw('    buffer_load_dword v26, v%d, s[%d:%d], s%d offen' % (t0, S1, S1 + 3, sTC)); g.pos += 1; g.vm.append((None, {'v26'}, False))
    if OPT['tw0']: wtouch(0, OPT['tw0'])
    pre = []
    P = pre.append
    P('v_and_b32 v%d, 31, v%d' % (N, L))
    P('v_lshrrev_b32 v%d, 5, v%d' % (HH, L))
    P('v_bfe_u32 v%d, v%d, 2, 2' % (R_, L))
    P('v_and_b32 v%d, 3, v%d' % (C_, L))
    P('v_bfe_u32 v%d, v%d, 4, 1' % (GP, L))
    P('v_lshrrev_b32 v%d, 1, v%d' % (t0, C_))
    P('v_and_b32 v%d, 1, v%d' % (t1, C_))
    P('v_lshl_or_b32 v%d, v%d, 1, v%d' % (SW, t1, t0))
    P('v_lshl_add_u32 v%d, v%d, 3, v%d' % (t2, HH, R_))
    P('v_lshlrev_b32 v%d, 9, v%d' % (t3, t2))
    P('v_lshl_add_u32 v%d, v%d, 5, v%d' % (t3, GP, t3))
    P('v_lshl_add_u32 v%d, v%d, 3, v%d' % (t3, SW, t3))
    for i in range(4):
        P('v_xor_b32 v%d, %d, v%d' % (t4, i, R_))
        P('v_lshl_add_u32 v%d, v%d, 6, v%d' % (VB[0][i], t4, t3))
        P('v_add_u32 v%d, 0x10000, v%d' % (VB[1][i], VB[0][i]))
        P('v_add_u32 v%d, 0x20000, v%d' % (VB[2][i], VB[0][i]))
    P('v_mul_u32_u24 v%d, 224, v%d' % (t3, t2))
    P('v_mul_u32_u24 v%d, 8320, v%d' % (t4, GP))
    P('v_add_u32 v%d, v%d, v%d' % (t3, t3, t4))
    P('v_lshl_add_u32 v%d, v%d, 3, v%d' % (VG[0], SW, t3))
    P('v_add_u32 v%d, 0x10000, v%d' % (VG[1], VG[0]))
    P('v_add_u32 v%d, 0x20000, v%d' % (VG[2], VG[0]))
    P('v_lshl_add_u32 v%d, v%d, 1, v%d' % (t0, GP, t0))
    P('v_lshl_add_u32 v%d, v%d, 2, v%d' % (t0, t1, t0))
    P('v_lshlrev_b32 v%d, 3, v%d' % (t0, t0))
    P('v_lshl_add_u32 v%d, v%d, 7, v%d' % (t0, t2, t0))
    P('v_lshrrev_b32 v%d, 1, v%d' % (t1, R_))
    for i in range(2):
        P('v_xor_b32 v%d, %d, v%d' % (t4, i, t1))
        P('v_lshl_add_u32 v%d, v%d, 6, v%d' % (OB[0][i], t4, t0))
        P('v_add_u32 v%d, 0x10000, v%d' % (OB[1][i], OB[0][i]))
        P('v_add_u32 v%d, 0x20000, v%d' % (OB[2][i], OB[0][i]))
    P('v_and_b32 v%d, 0x13, v%d' % (t0, N))
    P('v_bfe_u32 v%d, v%d, 2, 1' % (t1, N))
    P('v_lshl_or_b32 v%d, v%d, 3, v%d' % (t0, t1, t0))
    P('v_bfe_u32 v%d, v%d, 3, 1' % (t1, N))
    P('v_lshl_or_b32 v%d, v%d, 2, v%d' % (t0, t1, t0))
    P('v_and_b32 v%d, 15, v%d' % (t1, t0))
    P('v_xor_b32 v%d, v%d, v%d' % (t1, t1, HH))
    P('v_lshlrev_b32 v%d, 9, v%d' % (t0, t0))
    for i in range(8):
        P('v_xor_b32 v%d, %d, v%d' % (t4, 2 * i, t1))
        P('v_lshl_add_u32 v%d, v%d, 4, v%d' % (KB[0][i], t4, t0))
        P('v_add_u32 v%d, 0x10000, v%d' % (KB[1][i], KB[0][i]))
        P('v_add_u32 v%d, 0x20000, v%d' % (KB[2][i], KB[0][i]))
    P('v_lshlrev_b32 v%d, 4, v%d' % (VL16, L))
    P('v_mov_b32 v%d, 0' % VL)
    XR = [[NEGM + 4 * s + i for i in range(4)] for s in range(2)]
    P('v_bfe_u32 v%d, v%d, 1, 3' % (t0, N))
    P('v_xor_b32 v%d, v%d, v%d' % (t0, t0, HH))
    P('v_lshlrev_b32 v%d, 7, v%d' % (t1, N))
    P('v_add_u32 v%d, s%d, v%d' % (t1, sQB, t1))
    P('v_add_u32 v%d, 0x8000, v%d' % (t1, t1))
    for i in range(4):
        P('v_xor_b32 v%d, %d, v%d' % (t4, 2 * i, t0))
        P('v_lshl_add_u32 v%d, v%d, 4, v%d' % (XR[0][i], t4, t1))
        P('v_add_u32 v%d, 0x10000, v%d' % (XR[1][i], XR[0][i]))
    P('v_and_b32 v%d, 7, v%d' % (t0, L))
    P('v_lshlrev_b32 v%d, 2, v%d' % (t1, GP))
    P('v_xor_b32 v%d, v%d, v%d' % (t0, t0, t1))
    P('v_lshlrev_b32 v%d, 4, v%d' % (t0, t0))
    P('v_lshrrev_b32 v%d, 3, v%d' % (t1, L))
    P('v_mul_u32_u24 v%d, 896, v%d' % (t1, t1))
    P('v_add_u32 v%d, v%d, v%d' % (t0, t0, t1))
    P('s_mul_i32 s%d, s%d, %d' % (sOWO, sH, 256 * 896))
    P('s_mul_i32 s%d, s%d, %d' % (sT2, sW, 64 * 896))
    P('s_add_u32 s%d, s%d, s%d' % (sOWO, sOWO, sT2))
    for i in range(8):
        P('v_add_u32 v%d, %d, v%d' % (DV3[i], 8 * i * 896 - 1024 * (i & 3), t0))
    for i in range(4): P('v_mov_b32 v%d, 0' % T[4 + i])
    XA = OPT['xa']
    npre = (len(pre) + 4 * XA - 1) // (4 * XA)
    def xdma(cb):
        g('s_add_u32 m0, s%d, %d' % (sQB, (cb // 2 + 1) * 32768 + (cb & 1) * 4096))
        for gi in range(4):
            g('buffer_load_dwordx4 v%d, s[%d:%d], s%d offen offset:%d lds' % (XV[gi], SX, SX + 3, sT4, 1024 * gi), tag=('x', cb))
            for s in pre[:npre]: g(s)
            del pre[:npre]
        g('s_add_u32 s%d, s%d, 128' % (sT4, sT4))
    for cb in range(XA): xdma(cb)
    assert not pre
    st(2)
    g('s_cmp_lt_u32 s%d, 2' % sW)
    g('s_cbranch_scc0 L1_w23')
    g.fence()
    srd(g, SKV, 6, 8 * 2048 * 512)
    g('s_mov_b32 s%d, %d' % (sST1, 32 * 8192))
    g('s_lshl_b32 s%d, s%d, 20' % (sOKV, sKVH))
    g('s_add_u32 s%d, s%d, %d' % (sOKV, sOKV, 1536 * 512))
    g('s_lshl_b32 s%d, s%d, 9' % (sO1, sH))
    g('s_lshl_b32 s%d, s%d, 4' % (sT2, sW))
    g('v_add_u32 v%d, s%d, v%d' % (t0, sT2, HH))
    for par in range(2):
        g('v_add_u32 v%d, %d, v%d' % (t1, 2 * par, HH))
        g('v_lshlrev_b32 v%d, 2, v%d' % (t1, t1))
        g('v_xor_b32 v%d, v%d, v%d' % (t1, t1, N))
        g('v_lshlrev_b32 v%d, 4, v%d' % (t1, t1))
        g('v_lshl_add_u32 v%d, v%d, 13, v%d' % (t1, t0, t1))
        for i in range(par, 8, 2):
            g('v_add_u32 v%d, %d, v%d' % (DV1[i], 2 * i * 8192 - 1024 * (i & 3), t1))
    g('v_xor_b32 v%d, v%d, v%d' % (t2, HH, N))
    g('v_lshlrev_b32 v%d, 9, v%d' % (t0, t0))
    for i in range(8):
        g('v_xor_b32 v%d, %d, v%d' % (t1, 2 * i, t2))
        g('v_lshl_add_u32 v%d, v%d, 4, v%d' % (t1, t1, t0))
        g('v_add_u32 v%d, %d, v%d' % (DV2[i], 1024 * i - 1024 * (i & 3), t1))
    g('s_branch L1_wj')
    g.label('L1_w23')
    g.fence()
    g('s_cmp_eq_u32 s%d, 2' % sW)
    g('s_cselect_b32 s%d, 0, 8' % sT0)
    srd(g, SKV, 8, 8 * 2048 * 512)
    g('s_mov_b32 s%d, %d' % (sST1, 32 * 3584))
    g('s_lshl_b32 s%d, s%d, 20' % (sOKV, sKVH))
    g('s_add_u32 s%d, s%d, %d' % (sOKV, sOKV, 1536 * 512 - 16384))
    g('s_mul_i32 s%d, s%d, 224' % (sO1, sH))
    g('s_and_b32 s%d, s%d, 1' % (sT2, sW))
    g('s_lshl_b32 s%d, s%d, 4' % (sT2, sT2))
    g('s_mov_b32 s%d, 4682' % sIDX)
    g('v_mov_b32 v%d, 0x%x' % (t4, OOB))
    g('v_subrev_u32 v%d, s%d, v%d' % (t3, sT0, L))
    for i in range(8):
        g('v_add_u32 v%d, %d, v%d' % (t0, 64 * i, t3))
        g('v_cmp_gt_u32 vcc, 448, v%d' % t0)
        g('v_mul_u32_u24 v%d, s%d, v%d' % (t1, sIDX, t0))
        g('v_lshrrev_b32 v%d, 16, v%d' % (t1, t1))
        g('v_mul_u32_u24 v%d, %d, v%d' % (t1, 3584 - 224, t1))
        g('v_lshl_add_u32 v%d, v%d, 4, v%d' % (t1, t0, t1))
        g('v_subrev_u32 v%d, %d, v%d' % (t1, 1024 * (i & 3), t1))
        g('v_cndmask_b32 v%d, v%d, v%d, vcc' % (DV1[i], t4, t1))
    g('v_add_u32 v%d, s%d, v%d' % (t0, sT2, HH))
    for par in range(2):
        g('v_add_u32 v%d, %d, v%d' % (t1, 2 * par, HH))
        g('v_lshlrev_b32 v%d, 2, v%d' % (t1, t1))
        g('v_xor_b32 v%d, v%d, v%d' % (t1, t1, N))
        g('v_lshlrev_b32 v%d, 4, v%d' % (t1, t1))
        g('v_lshl_add_u32 v%d, v%d, 9, v%d' % (t1, t0, t1))
        for i in range(par, 8, 2):
            g('v_add_u32 v%d, %d, v%d' % (DV2[i], 1024 * i - 1024 * (i & 3), t1))
    g.label('L1_wj')
    g.fence()
    g('s_nop 1')

    def dma_items(stage):
        if stage < 14: dv, s, so, adv = DV1, S1, sO1, 's_add_u32 s%d, s%d, s%d' % (sO1, sO1, sST1)
        elif stage < 18: dv, s, so, adv = DV3, SWD, sOWD, ('s_add_u32 s%d, s%d, 256' % (sOWD, sOWD) if stage != 16 else 's_add_u32 s%d, s%d, s%d' % (sOWD, sOWD, sAD3))
        elif stage < 35: dv, s, so, adv = DV2, SKV, sOKV, 's_add_u32 s%d, s%d, 0x4000' % (sOKV, sOKV)
        else: dv, s, so, adv = DV3, SWO, sOWO, ['s_add_u32 s%d, s%d, 128' % (sOWO, sOWO), 's_cmp_eq_u32 s%d, s%d' % (sOWO, sWOE),
                                                's_cselect_b32 s%d, 896, 0' % sT2, 's_sub_u32 s%d, s%d, s%d' % (sOWO, sOWO, sT2)]
        items = []
        for i in range(8):
            def f(i=i):
                g('buffer_load_dwordx4 v%d, s[%d:%d], s%d offen offset:%d%s lds' % (dv[i], s, s + 3, so, 1024 * (i & 3), DFL), tag=('st', stage))
                if i == 7:
                    for a_ in ([adv] if isinstance(adv, str) else adv): g(a_)
            def m(i=i):
                g('s_add_u32 m0, s%d, %d' % (sQB, (stage % 5) * 32768 + 1024 * i))
            items.append((m if i % 4 == 0 else None, f))
        return items
    def dma_now(stage):
        for m, f in dma_items(stage):
            if m: m()
            f()
    st(2)
    srd(g, SWO, 12, 4096 * 896)
    srd(g, SWD, 20, 1792 * 896)
    srd(g, SWS, 26, WS_SIZE)
    srd(g, SDBG, 24, 256)
    srd(g, SOUT, 22, 2048 * 896)
    g('s_or_b32 s%d, s2, s%d' % (sT0, sW))
    g('s_cmp_lg_u32 s%d, 0' % sT0)
    g('s_cbranch_scc1 L1_non')
    g.raw('    s_memrealtime s[74:75]')
    g.raw('    v_mov_b32 v%d, 0' % t1)
    g.raw('    s_waitcnt lgkmcnt(0)')
    g.raw('    s_or_b32 s74, s74, 1')
    g.raw('    v_mov_b32 v%d, s74' % t0)
    g.raw('    buffer_store_dword v%d, v%d, s[%d:%d], 0 offen sc1' % (t0, t1, SDBG, SDBG + 3))
    g.label('L1_non')
    g.vm.append(('non', set(), True))
    g.vm.pop()
    g('s_mov_b32 s%d, 0x3f803f80' % sONE)
    g('s_mov_b32 s%d, 0xffff0000' % sMASK)
    g('s_mov_b32 s%d, %s' % (sTHR, f2h(TTHR)))
    g('s_lshl_b32 s%d, s%d, 6' % (sSP, sH))
    g('s_add_u32 s%d, s%d, s%d' % (sSP, sSP, sT3))
    g('s_mul_i32 s%d, s%d, 28672' % (sSP, sSP))
    if SP_BASE: g('s_add_u32 s%d, s%d, 0x%x' % (sSP, sSP, SP_BASE))
    g('s_add_u32 s%d, s%d, 28672' % (sSPE, sSP))
    g('s_add_u32 s%d, s%d, 0x%x' % (sYP, sSP, YP_OFF))
    g('s_add_u32 s%d, s%d, 896' % (sWOE, sOWO))
    g('s_mul_i32 s%d, s%d, 37' % (sT0, sH))
    g('s_lshr_b32 s%d, s%d, 8' % (sT0, sT0))
    g('s_mul_i32 s%d, s%d, 7' % (sT0, sT0))
    g('s_sub_u32 s%d, s%d, s%d' % (sT0, sH, sT0))
    g('s_lshl_b32 s%d, s%d, 7' % (sT1, sT0))
    g('s_add_u32 s%d, s%d, s%d' % (sOWO, sOWO, sT1))
    g('s_lshl_b32 s%d, s%d, 12' % (sT1, sT0))
    g('s_add_u32 s%d, s%d, s%d' % (sSP, sSP, sT1))
    g('s_mul_i32 s%d, s%d, %d' % (sOWD, sH, 112 * 896))
    g('s_and_b32 s%d, s%d, 1' % (sT1, sW))
    g('s_mul_i32 s%d, s%d, %d' % (sT1, sT1, 64 * 896))
    g('s_add_u32 s%d, s%d, s%d' % (sOWD, sOWD, sT1))
    g('s_lshr_b32 s%d, s%d, 1' % (sT1, sW))
    g('s_lshl_b32 s%d, s%d, 29' % (sAD3, sT1))
    g('s_add_u32 s%d, s%d, 256' % (sAD3, sAD3))
    g('s_lshl_b32 s%d, s%d, 7' % (sT1, sT1))
    g('s_add_u32 s%d, s%d, s%d' % (sOWD, sOWD, sT1))
    g('s_lshl_b32 s%d, s%d, 4' % (sFP, sT3))
    g('s_add_u32 s%d, s%d, s%d' % (sFP, sFP, sH))
    g('s_mul_i32 s%d, s%d, %d' % (sFP, sFP, FST))
    g('s_add_u32 s%d, s%d, 0x%x' % (sFP, sFP, FL_BASE))
    g('s_lshr_b32 s%d, s2, 3' % sI)
    g('s_sub_i32 s%d, s%d, 4' % (sCT, sI))
    g('s_max_i32 s%d, s%d, 0' % (sCT, sCT))
    g('s_mul_i32 s%d, s%d, 4682' % (sT0, sCT))
    g('s_lshr_b32 s%d, s%d, 16' % (sT0, sT0))
    g('s_mul_i32 s%d, s%d, 14' % (sT1, sT0))
    g('s_sub_u32 s%d, s%d, s%d' % (sCT, sCT, sT1))
    g('s_and_b32 s%d, s%d, 1' % (sT0, sT0))
    g('s_and_b32 s%d, s2, 7' % sT1)
    g('s_lshl_b32 s%d, s%d, 1' % (sT1, sT1))
    g('s_add_u32 s%d, s%d, s%d' % (sT0, sT0, sT1))
    g('s_lshl_b32 s%d, s%d, 2' % (sRO, sT0))
    g('s_add_u32 s%d, s%d, s%d' % (sRO, sRO, sW))
    g('s_mul_i32 s%d, s%d, %d' % (sFC, sRO, 16 * FST))
    g('s_add_u32 s%d, s%d, 0x%x' % (sFC, sFC, FL_BASE))
    g('s_mul_i32 s%d, s%d, 14' % (sPB, sRO))
    g('s_add_u32 s%d, s%d, s%d' % (sPB, sPB, sCT))
    g('s_lshl_b32 s%d, s%d, 11' % (sPB, sPB))
    if SP_BASE: g('s_add_u32 s%d, s%d, 0x%x' % (sPB, sPB, SP_BASE))
    g('s_mov_b32 s%d, 0xffff' % sPEND)
    g('s_mov_b32 s%d, 0' % sSPIN)
    g('s_mul_i32 s%d, s%d, %d' % (sXO, sRO, 32 * 896))
    g('s_lshl_b32 s%d, s%d, 6' % (sT0, sCT))
    g('s_add_u32 s%d, s%d, s%d' % (sXO, sXO, sT0))
    g('s_add_u32 s%d, s%d, 0x%x' % (sYB, sPB, YP_OFF))
    st(2)
    A0, A1, A2, A3 = T[4:8]
    def xread(cb):
        g.wait_tag(('x', cb), False)
        o = (cb // 2) * 32768 + (cb & 1) * 4096
        for tt in range(4):
            g('ds_read_b128 %s, v%d offset:%d' % (vr(X + 16 * cb + 4 * tt, 4), XR[o >> 16][tt], o & 0xffff))
    def stats(cb):
        for d in range(16):
            r = X + 16 * cb + d
            g('v_dot2c_f32_bf16 v%d, s%d, v%d' % ((A0, A1)[d & 1], sONE, r))
            g('v_dot2c_f32_bf16 v%d, v%d, v%d' % ((A2, A3)[d & 1], r, r))
    nx = XA; nd = 0
    def more(done):
        nonlocal nx, nd
        if nx < 7: xdma(nx); nx += 1
        if nx == 7:
            while nd < OPT['ndp'] and 2 * nd <= done: dma_now(nd); nd += 1
    more(0)
    xread(0)
    for cb in range(7):
        if cb < 6: more(cb)
        if cb < 6: xread(cb + 1)
        if cb == 0: st(2)
        if cb == 6: more(6); st(2)
        stats(cb)
    assert nx == 7 and nd == OPT['ndp']
    g('v_add_f32 v%d, v%d, v%d' % (A0, A0, A1))
    g('v_add_f32 v%d, v%d, v%d' % (A2, A2, A3))
    g('v_mov_b32 v%d, v%d' % (A1, A0))
    g('v_mov_b32 v%d, v%d' % (A3, A2))
    g('v_permlane32_swap_b32 v%d, v%d' % (A0, A1))
    g('v_permlane32_swap_b32 v%d, v%d' % (A2, A3))
    g('v_add_f32 v%d, v%d, v%d' % (A0, A0, A1))
    g('v_add_f32 v%d, v%d, v%d' % (A2, A2, A3))
    g('v_mul_f32 v%d, %s, v%d' % (A0, f2h(1.0 / 448), A0))
    g('v_mul_f32 v%d, %s, v%d' % (A2, f2h(1.0 / 448), A2))
    g('v_fma_f32 v%d, -v%d, v%d, v%d' % (A2, A0, A0, A2))
    g('v_max_f32 v%d, 0, v%d' % (A2, A2))
    g('v_add_f32 v%d, %s, v%d' % (A2, f2h(1e-5), A2))
    g('v_rsq_f32 v%d, v%d' % (A2, A2))
    g('v_mul_f32 v%d, %s, v%d' % (VA, f2h(CS), A2))
    g('v_mul_f32 v%d, -v%d, v%d' % (VBB, A0, VA))

    def norm_items(t):
        its = []
        for d in range(4):
            r = X + 4 * t + d
            a, b = T[2 * (d & 1)], T[2 * (d & 1) + 1]
            its += ['v_lshlrev_b32 v%d, 16, v%d' % (a, r),
                    'v_and_b32 v%d, s%d, v%d' % (b, sMASK, r),
                    'v_fma_f32 v%d, v%d, v%d, v%d' % (a, a, VA, VBB),
                    'v_fma_f32 v%d, v%d, v%d, v%d' % (b, b, VA, VBB),
                    'v_cvt_pk_bf16_f32 v%d, v%d, v%d' % (r, a, b)]
        return its
    g.wait_tag(('st', 0), False)
    g('s_barrier')
    st(3)

    M = []
    def tr(base, off): return [('ds_read_b64_tr_b16', 0, base, off[0]), ('ds_read_b64_tr_b16', 2, base, off[1])]
    idx = {}
    for s in range(14):
        bs, so = slot_off(s)
        for tt in range(2):
            t = 2 * s + tt
            idx[('p1', t)] = len(M)
            mq = []; mg = []
            for n in range(8):
                o = so + tt * 8192 + (n >> 2) * 256
                mq.append((s, tr(VB[bs][n & 3], (o, o + 2048)),
                          lambda af, n=n, t=t: MF(ar(16 * n, 16), vr(af, 4), vr(X + 4 * t, 4), ar(16 * n, 16) if t else '0')))
            for n in range(7):
                o = so + 16384 + 16 * tt * 224 + 32 * n
                mg.append((s, tr(VG[bs], (o, o + 4 * 224)),
                          lambda af, n=n, t=t: MF(ar(128 + 16 * n, 16), vr(af, 4), vr(X + 4 * t, 4), ar(128 + 16 * n, 16) if t else '0')))
            M += (mg + mq) if t == 27 else (mq + mg)
    kyp = len(M); idx['yp'] = kyp
    order = [(ct, ks) for ks in range(7) for ct in range(3)] + [(ct, ks) for ct in range(3, 14) for ks in range(7)]
    yfirst = {}; ylast = {}; hfirst = {}
    for ct, ks in order:
        s = 14 + ct // 4; bs, so = slot_off(s)
        o = so + ((ct >> 1) & 1) * 16384 + ks * 2048
        acc = YB[ct & 3]
        yfirst.setdefault(ct, len(M)); ylast[ct] = len(M); hfirst.setdefault(ks, len(M))
        M.append((s, tr(OB[bs][ct & 1], (o, o + 512)),
                  lambda af, acc=acc, ks=ks: MF(vr(acc, 16), vr(af, 4), vr(HF[ks], 4), vr(acc, 16) if ks else '0')))
    A0S = 18
    def add_qk(j):
        s = A0S + j; bs, so = slot_off(s); S = SB[j & 1]
        idx[('qk', j)] = len(M)
        for t in range(16):
            c = vr(S, 16) if t else ('0' if j < 2 else vr(NEGM, 16))
            M.append((s, [('ds_read_b128', 0, KB[bs][t & 7], so + (t >> 3) * 256)],
                      lambda af, t=t, S=S, c=c: MF(vr(S, 16), vr(af, 4), vr(Q + 4 * t, 4), c)))
    def add_pv(j):
        s = A0S + 1 + j; bs, so = slot_off(s)
        idx[('pv', j)] = len(M)
        for tt in range(2):
            for n in range(8):
                o = so + 16384 + tt * 8192 + (n >> 2) * 256
                c = '0' if (j == 0 and tt == 0) else ar(16 * n, 16)
                M.append((s, tr(VB[bs][n & 3], (o, o + 2048)),
                          lambda af, n=n, tt=tt, c=c: MF(ar(16 * n, 16), vr(af, 4), vr(PB[tt], 4), c)))
    add_qk(0)
    for j in range(15):
        add_qk(j + 1); add_pv(j)
    add_pv(15)
    for u in range(7):
        s = 35 + u; bs, so = slot_off(s)
        idx[('op', u)] = len(M)
        for t in range(16):
            for n in range(2):
                o = so + t * 2048
                acc = SACC[u & 1] + 16 * n
                M.append((s, tr(OB[bs][n], (o, o + 512)),
                          lambda af, acc=acc, t=t: MF(vr(acc, 16), vr(af, 4), vr(OF + 4 * t, 4), vr(acc, 16) if t else '0')))
    kt = len(M); o0 = idx[('op', 0)]
    def yq(i): return 128 + (64 + 4 * i) % 128
    for i in range(32):
        M.append((41, [], lambda af, i=i: MF(vr(YACC, 16), vr(IA[i & 1], 4), ar(yq(i), 4), vr(YACC, 16) if i else '0')))
    for i in range(32):
        M.append((41, [], lambda af, i=i: MF(vr(SA, 16), vr(IA[i & 1], 4), ar(4 * i, 4), vr(SA, 16) if i else '0')))
    NM = len(M)
    gaps = [[] for _ in range(NM + 1)]
    first = {}; last = {}
    for k, m in enumerate(M):
        first.setdefault(m[0], k); last[m[0]] = k
    bar_at = {}
    for s in range(NST - 1):
        bar_at[last[s] + 1 - OPT['barpos']] = s
    for t in range(27):
        k0 = idx[('p1', t)]
        spread(gaps, norm_items(t + 1), k0, k0 + 13)
    TA_, TB_, TD_ = 24, 25, 26
    def touch(n, srdn, so, flags=''):
        return ['v_min_u32 v%d, %d, v%d' % (TA_, (n - 1) * 16, VL16),
                'v_lshl_add_u32 v%d, v%d, 3, v%d' % (TA_, TA_, TB_),
                ('raw', 'buffer_load_dword v%d, v%d, s[%d:%d], %s offen%s' % (TD_, TA_, srdn, srdn + 3, so, flags))]
    if OPT['tw1']: gaps[OPT['tw1']] += [('call', lambda: wtouch(32 * OPT['tw0'], 14 - OPT['tw0']))]
    if OPT['twd'] >= 0:
        gaps[idx[('p1', OPT['twd'])] + 3] += ['s_lshl_b32 s%d, s%d, 2' % (sT0, sRL), 's_add_u32 s%d, s%d, s%d' % (sT0, sT0, sW), 's_mul_i32 s%d, s%d, %d' % (sT0, sT0, 1568 * F),
                     's_mul_i32 s%d, s%d, %d' % (sT1, sH, 112 * 896), 's_add_u32 s%d, s%d, s%d' % (sT0, sT0, sT1),
                     'v_mov_b32 v%d, 0' % TB_] + touch(13 * F, SWD, 's%d' % sT0)
    if OPT['tkv'] >= 0:
        gaps[idx[('p1', OPT['tkv'])] + 3] += ['s_lshl_b32 s%d, s%d, 1' % (sT0, sRL), 's_and_b32 s%d, s%d, 1' % (sT1, sH), 's_add_u32 s%d, s%d, s%d' % (sT0, sT0, sT1),
                     's_lshl_b32 s%d, s%d, 1' % (sT0, sT0), 's_and_b32 s%d, s%d, 1' % (sT1, sW), 's_add_u32 s%d, s%d, s%d' % (sT0, sT0, sT1),
                     's_mul_i32 s%d, s%d, %d' % (sT0, sT0, 4096 * F), 's_lshl_b32 s%d, s%d, 20' % (sT1, sKVH), 's_add_u32 s%d, s%d, s%d' % (sT0, sT0, sT1),
                     'v_mov_b32 v%d, 0x%x' % (TB_, 1536 * 512)] + touch(32 * F, SKV, 's%d' % sT0)
    if OPT['two'] >= 0:
        gaps[idx[('qk', OPT['two'])] + 3] += ['s_lshl_b32 s%d, s%d, 2' % (sT0, sRL), 's_add_u32 s%d, s%d, s%d' % (sT0, sT0, sW), 's_mul_i32 s%d, s%d, %d' % (sT0, sT0, 3584 * F),
                     's_mul_i32 s%d, s%d, %d' % (sT1, sH, 256 * 896), 's_add_u32 s%d, s%d, s%d' % (sT0, sT0, sT1),
                     'v_mov_b32 v%d, 0' % TB_] + touch(28 * F, SWO, 's%d' % sT0)
    def conv_items(dst, t, tmp):
        its = []
        base = 16 * (t >> 1) + 8 * (t & 1)
        for d in range(4):
            a, b = tmp[2 * (d & 1)], tmp[2 * (d & 1) + 1]
            its += ['v_accvgpr_read_b32 v%d, a%d' % (a, base + 2 * d),
                    'v_accvgpr_read_b32 v%d, a%d' % (b, base + 2 * d + 1),
                    'v_cvt_pk_bf16_f32 v%d, v%d, v%d' % (dst + 4 * t + d, a, b)]
        return its
    def h_items(n):
        its = []
        base = 128 + 16 * n
        for d in range(4):
            a, b, c, e = T[4 * (d & 1):4 * (d & 1) + 4]
            its += ['v_accvgpr_read_b32 v%d, a%d' % (a, base + 2 * d), 'v_accvgpr_read_b32 v%d, a%d' % (b, base + 8 + 2 * d),
                    'v_accvgpr_read_b32 v%d, a%d' % (c, base + 2 * d + 1), 'v_accvgpr_read_b32 v%d, a%d' % (e, base + 8 + 2 * d + 1),
                    'v_mul_f32 v%d, v%d, v%d' % (a, a, b), 'v_mul_f32 v%d, v%d, v%d' % (c, c, e),
                    'v_cvt_pk_bf16_f32 v%d, v%d, v%d' % (HF[n] + d, a, c)]
        return its
    direct = [int(x) for x in str(OPT['direct']).split(',')]
    parked = [ct for ct in range(14) if ct not in direct]
    assert len(parked) <= 8
    def yst(src, ct, q):
        return ('seq', ['s_add_u32 s%d, s%d, %d' % (sT0, sYP, (ct >> 1) * 4096),
                ('y', 'buffer_store_dwordx4 %s, v%d, s[%d:%d], s%d offen offset:%d%s' % (src, VL16, SWS, SWS + 3, sT0, (ct & 1) * 2048 + q * 1024, STF))])
    def yepi(ct):
        acc = YB[ct & 3]; its = []
        for d in range(8):
            if ct in direct:
                its.append('v_cvt_pk_bf16_f32 v%d, v%d, v%d' % (acc + d, acc + 2 * d, acc + 2 * d + 1))
                if d & 3 == 3: its.append(yst(vr(acc + d - 3, 4), ct, d >> 2))
            else:
                its += ['v_cvt_pk_bf16_f32 v%d, v%d, v%d' % (T[4 + (d & 3)], acc + 2 * d, acc + 2 * d + 1)]
                if d & 1: its += ['v_accvgpr_write_b32 a%d, v%d' % (128 + 8 * parked.index(ct) + d - 1, T[4 + ((d - 1) & 3)]),
                                  'v_accvgpr_write_b32 a%d, v%d' % (128 + 8 * parked.index(ct) + d, T[4 + (d & 3)])]
        return its
    k27 = idx[('p1', 27)]; kq0 = idx[('qk', 0)]
    qh = [(k27 + n + 2, hfirst[n], x) for n in range(7) for x in h_items(n)]
    def ydead(ct): return yfirst[ct + 4] if ct + 4 < 14 else (kq0 if (ct & 3) == 0 else idx[('qk', 1)] if (ct & 3) == 1 else idx[('qk', 1)] + 5)
    qe = [(ylast[ct] + 2, ydead(ct), x) for ct in range(14) for x in yepi(ct)]
    qq = [(kyp + 2, kq0 + t, x) for t in range(16) for x in conv_items(Q, t, T[0:4])]
    k = k27
    while qh or qe or qq:
        n = OPT['vq'] + (1 if qh else 0)
        while n > 0 or (qh and qh[0][1] <= k + 1) or (qe and qe[0][1] <= k + 1) or (qq and qq[0][1] <= k + 1):
            q_ = None
            if qh: q_ = qh if qh[0][0] <= k else None
            elif qq and qq[0][1] <= k + 2: q_ = qq
            elif qe and qe[0][0] <= k: q_ = qe
            elif qq: q_ = qq
            if not q_: break
            e, dl, x = q_.pop(0)
            assert e <= k < dl, (e, k, dl, x)
            gaps[k].append(x); n -= 1
        k += 1
    sys.stderr.write('conv sched ends at qk0%+d\n' % (k - kq0))
    kk = kq0 + 12
    for ct in parked:
        for q in range(2):
            gaps[kk].append(yst(ar(128 + 8 * parked.index(ct) + 4 * q, 4), ct, q)); kk += OPT['ypace']
    def exp_items(S, lo, P, sub=False):
        its = []
        for i in range(lo, lo + 8, 2):
            if sub:
                its += ['v_sub_f32 v%d, v%d, v%d' % (S + i, S + i, VMX), 'v_sub_f32 v%d, v%d, v%d' % (S + i + 1, S + i + 1, VMX)]
            its += ['v_exp_f32 v%d, v%d' % (S + i, S + i), 'v_exp_f32 v%d, v%d' % (S + i + 1, S + i + 1),
                    'v_add_f32 v%d, v%d, v%d' % (VL, VL, S + i), 'v_add_f32 v%d, v%d, v%d' % (VL, VL, S + i + 1),
                    'v_cvt_pk_bf16_f32 v%d, v%d, v%d' % (P + (i - lo) // 2, S + i, S + i + 1)]
        return its
    def max_items(S, dst):
        its = ['v_max3_f32 v%d, v%d, v%d, v%d' % (dst, S, S + 1, S + 2)]
        for i in range(3, 15, 2):
            its.append('v_max3_f32 v%d, v%d, v%d, v%d' % (dst, dst, S + i, S + i + 1))
        its.append('v_max_f32 v%d, v%d, v%d' % (dst, dst, S + 15))
        return its
    assert k <= idx[('qk', 1)] + 2
    vccbusy = set()
    for j in range(16):
        S = SB[j & 1]
        kb = idx[('pv', j)]
        if j == 0:
            ka = idx[('qk', 1)]
            its = max_items(S, VMX) + ['v_mov_b32 v%d, v%d' % (T[4], VMX), 'v_permlane32_swap_b32 v%d, v%d' % (VMX, T[4]),
                                       'v_max_f32 v%d, v%d, v%d' % (VMX, VMX, T[4])]
            spread(gaps, its, ka + 2, ka + 5)
            spread(gaps, exp_items(S, 0, PB[0], True), ka + 6, ka + 14)
            spread(gaps, exp_items(S, 8, PB[1], True), ka + 15, kb + 6)
            its = ['v_sub_f32 v%d, v%d, v%d' % (SB[1] + i, SB[1] + i, VMX) for i in range(16)]
            its += ['v_sub_f32 v%d, 0, v%d' % (NEGM + i, VMX) for i in range(16)]
            spread(gaps, its, kb + 3, kb + 11)
            spread(gaps, max_items(SB[1], T[5]), kb + 12, kb + 14)
        elif j < 15:
            ka = idx[('qk', j + 1)]
            spread(gaps, exp_items(S, 0, PB[0]), ka, ka + 9)
            spread(gaps, exp_items(S, 8, PB[1]), ka + 10, kb + 5)
            spread(gaps, max_items(SB[(j + 1) & 1], T[5]), kb + 6, kb + 14)
        else:
            gaps[kb - 1] += exp_items(S, 0, PB[0])
            spread(gaps, exp_items(S, 8, PB[1]), kb, kb + 6)
        if j < 15:
            gaps[kb + 14].append('v_cmp_lt_f32 vcc, s%d, v%d' % (sTHR, T[5]))
            gaps[kb + 15].insert(0, ('rare', j + 1))
            vccbusy.add(kb + 14)
    def vok(k): return k + 1 if k in vccbusy else k
    k5 = idx[('qk', 3)]
    its = ['v_mov_b32 v%d, 0' % VPOLL, 'buffer_load_dword v%d, v%d, s[%d:%d], 0 offen sc1' % (VNON, VPOLL, SDBG, SDBG + 3),
           'v_lshrrev_b32 v%d, 4, v%d' % (T[6], VL16),
           'v_cmp_gt_u32 vcc, %d, v%d' % (OPT.get('fw', 32), T[6]),
           'v_mov_b32 v%d, 0x%x' % (T[7], OOB),
           'v_lshlrev_b32 v%d, 2, v%d' % (T[8], T[6]),
           'v_and_b32 v%d, 15, v%d' % (VFL, T[6]),
           'v_cndmask_b32 v%d, v%d, v%d, vcc' % (VFO, T[7], T[8]),
           'v_mul_u32_u24 v%d, %d, v%d' % (VFL, FST, VFL),
           'v_and_b32 v%d, 31, v%d' % (T[7], T[6]), 'v_mul_u32_u24 v%d, 896, v%d' % (T[7], T[7]),
           'v_and_b32 v%d, 32, v%d' % (T[8], T[6]), 'v_add_u32 v%d, v%d, v%d' % (VXO, T[7], T[8])]
    spread(gaps, its, k5, k5 + 12)
    kp = vok(kk - OPT['ypace'] + OPT['ypd'])
    assert kp > k5 + 40
    gaps[kp] += [('nonce',), ('waittag', 'y'), 'buffer_store_dword v%d, v%d, s[%d:%d], s%d offen sc1' % (VNON, VFO, SWS, SWS + 3, sFP)]
    gaps[kp + OPT['yfl']] += ['buffer_load_dword v%d, v%d, s[%d:%d], s%d offen sc1' % (VPOLL, VFL, SWS, SWS + 3, sFC)]
    kq = vok(kp + OPT['yfl'] + OPT['ychk'])
    sys.stderr.write('ypub at iter %.1f, ychk at iter %.1f\n' % ((kp - kq0 - 16) / 32, (kq - kq0 - 16) / 32))
    gaps[kq] += [('poll', 'h', 0)]
    def pl(dst, so, off): return 'buffer_load_dwordx4 %s, v%d, s[%d:%d], s%d offen offset:%d sc1' % (ar(dst, 4), VL16, SWS, SWS + 3, so, off)
    lo, hi = kq + 1, o0 + OPT['yend']
    for i in range(32):
        gaps[lo + i * (hi - lo) // 32] += [pl(yq(i), sYB, (i & 1) * 1024)] + (['s_add_u32 s%d, s%d, %d' % (sYB, sYB, HS)] if i & 1 else [])
    g0 = idx[('pv', 15)] + 10
    its = [x for t in range(16) for x in conv_items(OF, t, T[0:4])]
    quota(gaps, its[:48], g0, 8)
    quota(gaps, its[48:], g0 + 6, 6)
    gaps[o0 + 26] += ['v_mov_b32 v%d, v%d' % (T[4], VL), 'v_mov_b32 v%d, v%d' % (T[5], VL)]
    gaps[o0 + 27] += ['v_permlane32_swap_b32 v%d, v%d' % (T[4], T[5])]
    gaps[o0 + 28] += ['v_add_f32 v%d, v%d, v%d' % (T[4], T[4], T[5])]
    gaps[o0 + 29] += ['v_rcp_f32 v%d, v%d' % (VRI, T[4])]
    its = ['s_lshr_b32 s%d, s%d, 1' % (sT1, sCT), 's_add_u32 s%d, s%d, 21' % (sT1, sT1),
           'v_bfe_u32 v%d, v%d, 4, 4' % (T[8], VL16),
           'v_sub_u32 v%d, s%d, v%d' % (VSTEP, sT1, T[8]),
           'v_mul_u32_u24 v%d, 37, v%d' % (VNEED, VSTEP),
           'v_lshrrev_b32 v%d, 8, v%d' % (VNEED, VNEED),
           'v_mul_u32_u24 v%d, 7, v%d' % (VNEED, VNEED),
           'v_sub_u32 v%d, v%d, v%d' % (VSTEP, VSTEP, VNEED),
           'v_add3_u32 v%d, v%d, v%d, 1' % (VNEED, VSTEP, VNON),
           's_add_u32 s%d, s%d, 128' % (sFC, sFC), 's_add_u32 s%d, s%d, 128' % (sFP, sFP)]
    spread(gaps, its, o0 + 48, o0 + 60)
    its = ['v_lshrrev_b32 v%d, 4, v%d' % (T[6], VL16),
           'v_lshrrev_b32 v%d, 3, v%d' % (T[7], T[6]),
           'v_xor_b32 v%d, v%d, v%d' % (T[7], T[7], T[6]),
           'v_and_b32 v%d, 4, v%d' % (T[7], T[7]),
           'v_lshlrev_b32 v%d, 1, v%d' % (T[7], T[7]),
           'v_bfe_u32 v%d, v%d, 3, 2' % (T[8], T[6]),
           'v_lshl_or_b32 v%d, v%d, 1, v%d' % (T[7], T[8], T[7]),
           'v_bfe_u32 v%d, v%d, 1, 1' % (T[8], T[6]),
           'v_or_b32 v%d, v%d, v%d' % (T[7], T[7], T[8]),
           'v_and_b32 v%d, 1, v%d' % (T[8], T[6]),
           'v_lshlrev_b32 v%d, 4, v%d' % (T[8], T[8]),
           'v_mov_b32 v%d, 0x3f80' % T[6],
           'v_lshlrev_b32 v%d, v%d, v%d' % (T[8], T[8], T[6])]
    for d in range(8):
        its += [('seq', ['v_cmp_eq_u32 vcc, %d, v%d' % (d, T[7]), 'v_cndmask_b32 v%d, 0, v%d, vcc' % (IA[0] + d, T[8])])]
    spread(gaps, its, o0 + 80, o0 + 94)
    def epi_items(u):
        its = []
        for n in range(2):
            acc = SACC[u & 1] + 16 * n
            for q in range(2):
                for d in range(4):
                    i = acc + 8 * q + 2 * d
                    its += ['v_mul_f32 v%d, v%d, v%d' % (i, i, VRI), 'v_mul_f32 v%d, v%d, v%d' % (i + 1, i + 1, VRI),
                            'v_cvt_pk_bf16_f32 v%d, v%d, v%d' % (ST + 8 * n + 4 * q + d, i, i + 1)]
                its.append(('tag', ('s', u), 'buffer_store_dwordx4 %s, v%d, s[%d:%d], s%d offen offset:%d%s' % (vr(ST + 8 * n + 4 * q, 4), VL16, SWS, SWS + 3, sSP, n * 2048 + q * 1024, STF)))
        if u < 6:
            its += [('seq', ['s_add_u32 s%d, s%d, 4096' % (sSP, sSP), 's_cmp_eq_u32 s%d, s%d' % (sSP, sSPE),
                    's_cselect_b32 s%d, 28672, 0' % sT0, 's_sub_u32 s%d, s%d, s%d' % (sSP, sSP, sT0)])]
        return its
    gaps[kt - 1].append(('noty',))
    spub = 'buffer_store_dword v%d, v%d, s[%d:%d], s%d offen sc1' % (VNON, VFO, SWS, SWS + 3, sFP)
    def sfl(u): return 'buffer_load_dword v%d, v%d, s[%d:%d], s%d offen sc1' % (VP2[u & 1], VFL, SWS, SWS + 3, sFC)
    LS = {k: [o0 + int(x) for x in str(OPT[k]).split(',')] for k in ('pub', 'fl', 'chk')}
    npub_pre = 0
    for u in range(7):
        k0 = o0 + 32 * (u + 1)
        spread(gaps, epi_items(u), k0 + (1 if u < 6 else 0), k0 + (OPT['epw'] if u < 6 else 6))
        if LS['pub'][u] < kt: npub_pre += 1
        gaps[LS['pub'][u]] += ['v_add_u32 v%d, 1, v%d' % (VNON, VNON), ('waittag', ('s', u)), spub]
    def rdy(vp): return ['v_sub_u32 v%d, v%d, v%d' % (vp, vp, VNEED), 'v_cmp_ge_u32 vcc, 7, v%d' % vp, 's_and_b32 s%d, vcc_lo, s%d' % (sRDY, sPEND)]
    def take(r0, r1):
        return ['s_ff1_i32_b32 s%d, s%d' % (sHA, sRDY), 's_bitset0_b32 s%d, s%d' % (sRDY, sHA), 's_bitset0_b32 s%d, s%d' % (sPEND, sHA),
                's_min_u32 s%d, s%d, 255' % (sHA, sHA), 's_mul_i32 s%d, s%d, %d' % (sHA, sHA, HS), 's_add_u32 s%d, s%d, s%d' % (sHA, sHA, sPB)] + \
               ['buffer_load_dwordx4 %s, v%d, s[%d:%d], s%d offen offset:%d sc1' % (r, VL16, SWS, SWS + 3, sHA, o) for r, o in ((r0, 0), (r1, 1024))]
    nfl = 0
    for gi in range(4):
        kl = LS['chk'][gi]
        if LS['fl'][gi] > o0:
            nfl += 1
            gaps[LS['fl'][gi]] += [sfl(nfl)]
            gaps[kl] += rdy(VP2[nfl & 1])
        for j in range(4):
            its = take(ar(32 * gi + 8 * j, 4), ar(32 * gi + 8 * j + 4, 4))
            if kl < kt:
                th = OPT['thin']
                gaps[kl + 1 + 2 * th * j] += its[:6]; gaps[kl + 2 + 2 * th * j] += its[6:7]; gaps[kl + 2 + th + 2 * th * j] += its[7:]
            else:
                assert kl + j < kt + 32 + 8 * gi + 2 * j
                gaps[kl + j] += its
    gaps[o0 + OPT['flt']] += [sfl(0)]
    ks_ = LS['chk'][-1]
    gaps[o0 + 110] += ['buffer_load_dwordx4 %s, v%d, s[%d:%d], s%d offen' % (vr(XF[0], 4), VXO, SX, SX + 3, sXO),
                       'buffer_load_dwordx4 %s, v%d, s[%d:%d], s%d offen offset:16' % (vr(XF[1], 4), VXO, SX, SX + 3, sXO)]
    Y = YACC; E = 112; XX = 0
    its = ['s_mov_b32 s%d, %s' % (sT3, f2h(KINV)), 's_mov_b32 s%d, %s' % (sT4, f2h(-KINV * math.log2(math.e)))]
    for d in range(8):
        its += ['v_lshlrev_b32 v%d, 16, v%d' % (XX + 2 * d, XF[d >> 2] + (d & 3)), 'v_and_b32 v%d, s%d, v%d' % (XX + 2 * d + 1, sMASK, XF[d >> 2] + (d & 3))]
    spread(gaps, its, kt + 12, kt + 20)
    its = ['v_mul_f32 v%d, s%d, v%d' % (E + i, sT4, Y + i) for i in range(16)]
    its += ['v_exp_f32 v%d, v%d' % (E + i, E + i) for i in range(16)]
    for i in range(16): its += ['v_mul_f32 v%d, s%d, v%d' % (Y + i, sT3, Y + i), 'v_add_f32 v%d, 1.0, v%d' % (E + i, E + i)]
    its += ['v_rcp_f32 v%d, v%d' % (E + i, E + i) for i in range(16)]
    its += ['v_mul_f32 v%d, v%d, v%d' % (Y + i, Y + i, E + i) for i in range(16)]
    spread(gaps, its, kt + 33, kt + 46)

    def emit_reads(k):
        s, rd, fn = M[k]
        assert s in certified, (k, s)
        af = AF[k % PF]
        for mn, w, base, off in rd:
            width = 4 if mn.endswith('b128') else 2
            g('%s %s, v%d offset:%d' % (mn, vr(af + w, width), base, off))
    certified = {0}
    dmaq = [x for s_ in range(OPT['ndp'], 4) for x in dma_items(s_)]
    for k in range(PF): emit_reads(k)
    for s in norm_items(0): g(s)
    since = 0
    stamp_at = {idx[('p1', 14)], kyp, idx[('qk', 0)], idx[('qk', 4)], idx[('qk', 8)], o0, kt}
    if OPT.get('stk'): stamp_at = {o0 + int(x) for x in OPT['stk'].split(',')}
    if OPT.get('stp'): stamp_at = {int(x) for x in OPT['stp'].split(',')}
    stamp4 = {0, idx[('qk', 0)], o0, kt}
    rare_sites = []
    oolines = []
    def spin(name, back, vp, vn, load):
        o = oolines
        o.append('%s:' % name)
        if vn:
            o.append('    s_cmp_lt_u32 s%d, 4' % sI)
            o.append('    s_cbranch_scc1 %s' % back)
        o.append('    s_mov_b32 s%d, 0' % sSPIN)
        o.append('%s_l:' % name)
        o.append('    s_sleep 2')
        o.append('    ' + load)
        o.append('    s_add_u32 s%d, s%d, 1' % (sSPIN, sSPIN))
        o.append('    s_cmp_gt_u32 s%d, %d' % (sSPIN, SPIN_MAX))
        o.append('    s_cbranch_scc1 %s' % back)
        o.append('    s_waitcnt vmcnt(0)')
        for x in (vp if isinstance(vp, list) else [vp]):
            o.append('    ' + x)
            o.append('    s_nop 1')
        o.append('    s_cbranch_vccnz %s_l' % name)
        o.append('    s_branch %s' % back)
    for k in range(NM):
        s, rd, fn = M[k]
        if k in stamp_at: st(1)
        if k in stamp4: st(4); st(4, real=True)
        if k % 2 == 0 and k + 1 < NM:
            a = AF[(k + 1) % PF]
            g.wait_regs(['v%d' % (a + 3), 'v%d' % (a + 1)])
        g(fn(AF[k % PF]))
        if k in bar_at:
            sb = bar_at[k]
            assert len(dmaq) <= 16
            g.wait_tag(('st', sb + 1), False)
            if not (OPT.get('xbar') and sb >= 2): g('s_barrier')
            certified.add(sb + 1)
            if sb + 4 < NST and not (OPT.get('xdma') and sb >= 1): dmaq += dma_items(sb + 4)
            since = OPT['dmaper']
        dma = None
        since += 1
        if dmaq and (since >= (OPT['dmaper'] if k < o0 else OPT['dmo']) or len(dmaq) > 8):
            dma = dmaq.pop(0); since = 0
            if dma[0]: dma[0]()
        if k + PF < NM: emit_reads(k + PF)
        if dma: dma[1]()
        for it in gaps[k]:
            if isinstance(it, str):
                if OPT.get('xvalu') and it.startswith('v_') and (k < k27 - 15 or idx[('qk', 4)] <= k < idx[('pv', 14)]) and 'v_cmp' not in it and ('v%d,' % TA_) not in it and ('v%d,' % TB_) not in it: continue
                g(it); continue
            if it[0] == 'rare':
                j = it[1]
                g('s_cbranch_vccnz L1_tr%d' % j)
                g.label('L1_bk%d' % j)
                rare_sites.append(j)
            elif it[0] == 'tag': g(it[2], tag=it[1])
            elif it[0] == 'raw':
                g('s_nop 0'); g.raw('    ' + it[1]); g.pos += 1; g.vm.append((None, {'v%d' % TD_}, False))
            elif it[0] == 'waittag': g.wait_tag(it[1], False)
            elif it[0] == 'nonce':
                c = 'v_cmp_eq_u32 vcc, 0, v%d' % VNON
                g(c); g('s_nop 1'); g('s_cbranch_vccnz L1_spn'); g.label('L1_spn_b')
                spin('L1_spn', 'L1_spn_b', c, None, 'buffer_load_dword v%d, v%d, s[%d:%d], 0 offen sc1' % (VNON, VPOLL, SDBG, SDBG + 3))
            elif it[0] == 'poll':
                vp, vn = VPOLL, VNON
                c = 'v_cmp_ne_u32 vcc, v%d, v%d' % (vp, vn)
                nm = 'L1_sp' + it[1]
                g(c); g('s_nop 1'); g('s_cbranch_vccnz ' + nm); g.label(nm + '_b')
                spin(nm, nm + '_b', c, True, 'buffer_load_dword v%d, v%d, s[%d:%d], s%d offen sc1' % (vp, VFL, SWS, SWS + 3, sFC))
            elif it[0] == 'call': it[1]()
            elif it[0] == 'seq':
                for x in it[1]: (g(x) if isinstance(x, str) else g(x[1], tag=x[0]))
            elif it[0] == 'noty':
                g('s_cmp_lt_u32 s%d, 4' % sI)
                g('s_cbranch_scc1 L1_noty')
                nst_noty = st.n
    st(1)
    for x in rdy(VP2[0]): g(x)
    g('s_mov_b32 s%d, 0' % sSPIN)
    R = g.raw
    for r in range(16):
        R('    s_cmp_eq_u32 s%d, 0' % sPEND)
        R('    s_cbranch_scc1 L1_sum%d' % r)
        R('L1_r%d:' % r)
        R('    s_cmp_lg_u32 s%d, 0' % sRDY)
        R('    s_cbranch_scc1 L1_g%d' % r)
        if OPT['slp']: R('    s_sleep %d' % OPT['slp'])
        if OPT['pmask']:
            R('    s_mov_b32 exec_lo, s%d' % sPEND)
            R('    s_mov_b32 exec_hi, 0')
        R('    ' + sfl(0))
        if OPT['pmask']: R('    s_mov_b64 exec, -1')
        R('    s_add_u32 s%d, s%d, 1' % (sSPIN, sSPIN))
        R('    s_cmp_gt_u32 s%d, %d' % (sSPIN, SPIN_MAX))
        R('    s_cbranch_scc1 L1_sum%d' % r)
        R('    s_waitcnt vmcnt(0)')
        for x in rdy(VP2[0]): R('    ' + x); R('    s_nop 1')
        R('    s_branch L1_r%d' % r)
        R('L1_g%d:' % r)
        for x in take(vr(128 + 8 * r, 4), vr(132 + 8 * r, 4)): R('    ' + x)
    for r in range(16, -1, -1):
        R('L1_sum%d:' % r)
        if r:
            R('    s_waitcnt vmcnt(0)')
            for q in range(2): R('    ' + MF(vr(SA, 16), vr(IA[q], 4), vr(128 + 8 * (r - 1) + 4 * q, 4), vr(SA, 16)))
    g.vm = []; g.fence()
    g('s_nop 15')
    for i in range(16): g('v_fma_f32 v%d, v%d, v%d, v%d' % (XX + i, Y + i, SA + i, XX + i))
    for d in range(8): g('v_cvt_pk_bf16_f32 v%d, v%d, v%d' % (E + d, XX + 2 * d, XX + 2 * d + 1))
    g('buffer_store_dwordx4 %s, v%d, s[%d:%d], s%d offen' % (vr(E, 4), VXO, SOUT, SOUT + 3, sXO))
    g('buffer_store_dwordx4 %s, v%d, s[%d:%d], s%d offen offset:16' % (vr(E + 4, 4), VXO, SOUT, SOUT + 3, sXO))
    st(5); st(real=True)
    st.dump(g, SWS, 2, STAMP_BASE, T[0])
    g.label('L1_end')
    g('s_endpgm')
    r = Gen()
    r.label('L1_noty')
    r('s_nop 15')
    for it in epi_items(6): r(it if isinstance(it, str) else it[2])
    r('v_add_u32 v%d, %d, v%d' % (VNON, 7 - npub_pre, VNON))
    r.waitall()
    r(spub)
    if OPT['stamp']:
        for i in range(nst_noty, st.n): r('s_memrealtime s[%d:%d]' % (sSTAMP + 2 * i, sSTAMP + 2 * i + 1))
        st.dump(r, SWS, 2, STAMP_BASE, T[0])
    r('s_endpgm')
    g.out += r.out + oolines
    for j in rare_sites:
        g.label('L1_tr%d' % j)
        g.raw('    s_mov_b32 s%d, %d' % (sIDX, j))
        g.raw('    s_branch L1_rare%d' % (j & 1))
    for par in range(2):
        r = Gen()
        S = SB[par]
        r.label('L1_rare%d' % par)
        r('s_nop 15')
        r('v_mov_b32 v%d, v%d' % (T[4], T[5]))
        r('v_permlane32_swap_b32 v%d, v%d' % (T[5], T[4]))
        r('v_max3_f32 v%d, v%d, v%d, 0' % (T[5], T[5], T[4]))
        r('v_exp_f32 v%d, -v%d' % (T[4], T[5]))
        for i in range(16):
            r('v_sub_f32 v%d, v%d, v%d' % (S + i, S + i, T[5]))
            r('v_sub_f32 v%d, v%d, v%d' % (NEGM + i, NEGM + i, T[5]))
        r('v_mul_f32 v%d, v%d, v%d' % (VL, VL, T[4]))
        for i in range(128):
            tt = T[i & 1]
            r('v_accvgpr_read_b32 v%d, a%d' % (tt, i))
            r('v_mul_f32 v%d, v%d, v%d' % (tt, tt, T[4]))
            r('v_accvgpr_write_b32 a%d, v%d' % (i, tt))
        r('s_nop 3')
        js = [j for j in rare_sites if (j & 1) == par]
        for j in js[:-1]:
            r('s_cmp_eq_u32 s%d, %d' % (sIDX, j))
            r('s_cbranch_scc1 L1_bk%d' % j)
        if par: r.label('L1_last')
        r('s_branch L1_bk%d' % js[-1])
        g.out += r.out
    sys.stderr.write('K1: %d mfma, nops %d, counts %s\n' % (NM, g.nnop, g.count))
    return g.out

def main():
    out = []
    hdr = open('cdna_kernels/%s.s.ref' % NAME).read().split('\n')
    for l in hdr:
        if l.startswith('; @launch'): break
        out.append(l)
    nm = NAME + '_kernel'
    out.append('; @launch grid=(256,1,1) block=(256,1,1) lds=163840')
    out.append('.amdgcn_target "amdgcn-amd-amdhsa--gfx950"')
    out.append('.text')
    out += ['.globl %s' % nm, '.p2align 8', '.type %s,@function' % nm]
    out += gen_k1()
    out.append('.section .rodata,"a"')
    out += ['.p2align 6', '.amdhsa_kernel %s' % nm, '  .amdhsa_next_free_vgpr 512', '  .amdhsa_next_free_sgpr 102',
            '  .amdhsa_accum_offset 256', '  .amdhsa_group_segment_fixed_size 0', '  .amdhsa_kernarg_size 96',
            '  .amdhsa_user_sgpr_count 2', '  .amdhsa_user_sgpr_kernarg_segment_ptr 1',
            '  .amdhsa_system_sgpr_workgroup_id_x 1', '.end_amdhsa_kernel']
    open(sys.argv[1], 'w').write('\n'.join(out) + '\n')
main()
```

```python
import sys, struct, math
from asmlib import *

def f2h(x): return '0x%08x' % struct.unpack('<I', struct.pack('<f', x))[0]

NAME = 'recurrent_scan__sliding_block_cached__glu_gated_bilinear__prompt'
OPT = dict(stamp=0, tcode=1, grp='x0123456', pf=6, dmaper=3, barpos=8, hx=2, wsoff=0, tw1=1, tw0=5, xa=4, tx=0, slp=0, pmask=1, thin=3, ndp=4, twd=6, tkv=16, two=9, epw=12, dmo=1, vq=6,
           direct='0,1,2,5,8,11', ypace=11, ypd=40, yfl=20, ychk=90, yend=0,
           pub='110,142,174,206,222,232,233', fl='231,0,0,0', chk='234,238,242,246', flt=250, fst=256)
for a in sys.argv[2:]:
    k, v = a.split('=')
    OPT[k] = int(v) if v.lstrip('-').isdigit() else v
STF = {0: ' sc1', 1: '', 2: ' sc0 sc1', 3: ' sc1 nt', 4: ' nt'}[OPT.get('stf', 0)]

DFL = {0: '', 1: ' nt', 2: ' sc1', 3: ' sc0', 4: ' sc0 sc1'}[OPT.get('dfl', 0)]
CS = math.log2(math.e) / 16.0
KINV = 1.0 / (CS * CS)
SP_BASE = OPT['wsoff'] << 20
YP_OFF = 0x1C00000
FL_BASE = SP_BASE + 0x3800000
STAMP_BASE = 0x3E00000
FST = OPT.get('fst', 4352)
WS_SIZE = 268435456
OOB = 0x40000000
TTHR = 24.0
SPIN_MAX = 1 << 17

PF = OPT['pf']
AF = [4 * i for i in range(PF)]
DV1 = list(range(28, 36)); DV2 = list(range(36, 44)); DV3 = list(range(44, 52))
VB = [[52 + 4 * s + i for i in range(4)] for s in range(3)]
VG = [64, 65, 66]
OB = [[67 + 2 * s + i for i in range(2)] for s in range(3)]
KB = [[73 + 8 * s + i for i in range(8)] for s in range(3)]
VL16 = 97; VL = 98; VA = 99; VBB = 100; VMX = 101; VRI = 102
VFO = 99; VFL = 100
T = list(range(103, 112))
NEGM = 112; ST = 112
X = 128; Q = 128; SB = [192, 208]; PB = [224, 228]
VNON = 28; VPOLL = 29; VP2 = [30, 31]; VNEED = 32; VSTEP = 33; VXO = 101
OF = 128; SACC = [192, 224]
HF = [24, 28, 32, 112, 116, 120, 124]; YB = [192, 208, 224, 240]
YACC = 76; SA = 36; XF = [60, 92]; IA = [52, 56]
HS = 64 * 28672
SX, S1, SKV, SWO, SWD, SWS, SDBG, SOUT = 28, 32, 36, 40, 44, 48, 4, 8
sW, sH, sRT, sKVH, sO1, sST1, sOKV, sOWO, sQB = 52, 53, 54, 55, 56, 57, 58, 59, 60
sT0, sT1, sT2, sONE, sMASK, sTHR, sIDX, sSP, sYP, sAD3, sT3, sT4 = 61, 62, 63, 64, 65, 66, 67, 68, 69, 70, 71, 72
sI, sCT, sRO, sOWD, sFP, sFC, sYB, sPB, sXO, sNON, sSPIN = 12, 13, 14, 15, 16, 17, 18, 19, 20, 21, 22
sWOE, sSPE, sPEND = 23, 24, 25
sRDY, sHA = 26, 27
sTC, sTS, sTI, sRL = 73, 100, 101, 3
sSTAMP = 76
CL = 5
NST = 42

def slot_off(stage):
    s = stage % 5
    return s // 2, (s % 2) * 32768

def srd(g, d, p, size):
    g('s_mov_b32 s%d, s%d' % (d, p))
    g('s_and_b32 s%d, s%d, 0xffff' % (d + 1, p + 1))
    g('s_mov_b32 s%d, 0x%x' % (d + 2, size))
    g('s_mov_b32 s%d, 0x20000' % (d + 3))

class Stamper:
    def __init__(self, g): self.g = g; self.n = 0
    def __call__(self, lvl=3, real=False):
        if real and lvl == 3: lvl = 7
        if (OPT['stamp'] & lvl) and self.n < 12:
            self.g('%s s[%d:%d]' % ('s_memrealtime' if (real or OPT.get('real')) else 's_memtime', sSTAMP + 2 * self.n, sSTAMP + 2 * self.n + 1))
            self.n += 1
    def dump(self, g, srdn, wgs, base, vt):
        if not OPT['stamp']: return
        g.waitall()
        g('s_lshl_b32 s%d, s%d, 2' % (sT0, wgs))
        g('s_add_u32 s%d, s%d, s%d' % (sT0, sT0, sW))
        g('s_lshl_b32 s%d, s%d, 6' % (sT0, sT0))
        g('s_add_u32 s%d, s%d, 0x%x' % (sT0, sT0, base))
        g('v_mov_b32 v%d, 0' % (vt + 1))
        for i in range(self.n):
            g('v_mov_b32 v%d, s%d' % (vt, sSTAMP + 2 * i))
            g('buffer_store_dword v%d, v%d, s[%d:%d], s%d offen offset:%d' % (vt, vt + 1, srdn, srdn + 3, sT0, 4 * i))
            g('s_nop 1')

def spread(gaps, items, lo, hi):
    n = hi - lo + 1
    m = len(items)
    for i, it in enumerate(items):
        gaps[lo + (i * n) // m].append(it)

def quota(gaps, items, lo, q):
    for i, it in enumerate(items):
        gaps[lo + i // q].append(it)

def MF(d, a, b, c): return 'v_mfma_f32_32x32x16_bf16 %s, %s, %s, %s' % (d, a, b, c)

def gen_k1():
    g = Gen(); st = Stamper(g)
    KN = NAME + '_kernel'
    g.label(KN)
    g('s_cmp_ge_u32 s2, 256')
    g('s_cbranch_scc1 L1_end')
    st(7); st(real=True)
    g('s_load_dwordx16 s[4:19], s[0:1], 0')
    g('s_load_dwordx8 s[20:27], s[0:1], 64')
    if OPT['tcode'] == 2:
        g('s_getpc_b64 s[74:75]')
        g.label('L1_pc')
        g('s_lshr_b32 s%d, s2, 3' % sT1)
        g('s_mul_i32 s%d, s%d, %d' % (sT2, sT1, 4 * CL * 128))
        g('v_min_u32 v253, %d, v0' % (4 * CL - 1))
        g('v_lshlrev_b32 v253, 7, v253')
        g('v_add_u32 v253, s%d, v253' % sT2)
        g('v_min_u32 v253, L1_last-L1_pc, v253')
        g('v_mov_b32 v25, s75')
        g('v_add_co_u32 v24, vcc, s74, v253')
        g('v_addc_co_u32 v25, vcc, 0, v25, vcc')
        g('global_load_dword v27, v[24:25], off')
    L, N, HH, R_, C_, GP, SW = 240, 241, 242, 243, 244, 245, 249
    t0, t1, t2, t3, t4 = 250, 251, 252, 253, 254
    XV = T[0:4]
    g('v_lshrrev_b32 v%d, 6, v0' % t0)
    g('v_and_b32 v%d, 63, v0' % L)
    g('v_readfirstlane_b32 s%d, v%d' % (sW, t0))
    HX = OPT['hx']; lhx = HX.bit_length() - 1
    ng = 16 // HX
    g('s_and_b32 s%d, s2, 7' % sT0)
    g('s_lshr_b32 s%d, s2, 3' % sT1)
    g('s_and_b32 s%d, s%d, %d' % (sT2, sT0, ng - 1))
    g('s_lshl_b32 s%d, s%d, %d' % (sH, sT2, lhx))
    g('s_and_b32 s%d, s%d, %d' % (sT2, sT1, HX - 1))
    g('s_add_u32 s%d, s%d, s%d' % (sH, sH, sT2))
    g('s_lshr_b32 s%d, s%d, %d' % (sT2, sT0, 4 - lhx))
    g('s_lshl_b32 s%d, s%d, %d' % (sRT, sT2, 5 - lhx))
    g('s_lshr_b32 s%d, s%d, %d' % (sT2, sT1, lhx))
    g('s_add_u32 s%d, s%d, s%d' % (sRT, sRT, sT2))
    g('s_lshr_b32 s%d, s%d, 1' % (sKVH, sH))
    g('s_lshl_b32 s%d, s%d, 13' % (sQB, sW))
    g('s_lshl_b32 s%d, s%d, 2' % (sT3, sRT))
    g('s_add_u32 s%d, s%d, s%d' % (sT3, sT3, sW))
    g('s_mul_i32 s%d, s%d, %d' % (sT4, sT3, 32 * 896))
    g('v_lshrrev_b32 v%d, 3, v%d' % (t0, L))
    g('v_and_b32 v%d, 7, v%d' % (t1, L))
    g('v_lshrrev_b32 v%d, 4, v%d' % (t2, L))
    g('v_xor_b32 v%d, v%d, v%d' % (t1, t1, t2))
    g('v_mul_u32_u24 v%d, 896, v%d' % (t0, t0))
    g('v_lshl_add_u32 v%d, v%d, 4, v%d' % (XV[0], t1, t0))
    g('v_xor_b32 v%d, 64, v%d' % (t1, XV[0]))
    g('v_add_u32 v%d, %d, v%d' % (XV[2], 2 * (7168 - 1024), XV[0]))
    g('v_add_u32 v%d, %d, v%d' % (XV[1], 7168 - 1024, t1))
    g('v_add_u32 v%d, %d, v%d' % (XV[3], 3 * (7168 - 1024), t1))
    if OPT['tcode'] == 1:
        g('s_getpc_b64 s[74:75]')
        g.label('L1_pc')
        g('s_lshl_b32 s%d, s%d, 2' % (sT2, sT1))
        g('s_add_u32 s%d, s%d, s%d' % (sT2, sT2, sW))
        g('s_mul_i32 s%d, s%d, %d' % (sT2, sT2, CL * 128))
        g('v_min_u32 v%d, %d, v%d' % (t3, CL - 1, L))
        g('v_lshlrev_b32 v%d, 7, v%d' % (t3, t3))
        g('v_add_u32 v%d, s%d, v%d' % (t3, sT2, t3))
        g('v_min_u32 v%d, L1_last-L1_pc, v%d' % (t3, t3))
        g('v_mov_b32 v25, s75')
        g('v_add_co_u32 v24, vcc, s74, v%d' % t3)
        g('v_addc_co_u32 v25, vcc, 0, v25, vcc')
        g('global_load_dword v27, v[24:25], off')
    st(2)
    g('s_waitcnt lgkmcnt(0)')
    st(2)
    srd(g, SX, 4, 2048 * 896)
    if OPT['tx']:
        g('v_lshrrev_b32 v%d, 1, v%d' % (t0, L))
        g('v_mul_u32_u24 v%d, 896, v%d' % (t0, t0))
        g('v_and_b32 v%d, 1, v%d' % (t1, L))
        g('v_lshl_add_u32 v%d, v%d, 7, v%d' % (t0, t1, t0))
        for i in range(OPT['tx']):
            g('s_nop 0'); g.raw('    buffer_load_dword v26, v%d, s[%d:%d], s%d offen offset:%d' % (t0, SX, SX + 3, sT4, 640 - 256 * i)); g.pos += 1; g.vm.append((None, {'v26'}, False))
    g('s_cmp_eq_u32 s%d, 2' % sW)
    g('s_cselect_b32 s%d, s16, s18' % S1)
    g('s_cselect_b32 s%d, s17, s19' % (S1 + 1))
    g('s_and_b32 s%d, s%d, 1' % (sT0, sH))
    g('s_mul_i32 s%d, s%d, 448' % (sTC, sKVH))
    g('s_and_b32 s%d, s%d, 0xffffff80' % (sTC, sTC))
    g('s_lshl_b32 s%d, s%d, 9' % (sT1, sH))
    g('s_mov_b32 s%d, 0x%x' % (S1 + 2, 448 * 3584))
    g('s_mov_b32 s%d, 3584' % sTS)
    g('s_cmp_lt_u32 s%d, 2' % sW)
    g('s_cselect_b32 s%d, s10, s%d' % (S1, S1))
    g('s_cselect_b32 s%d, s11, s%d' % (S1 + 1, S1 + 1))
    g('s_cselect_b32 s%d, 0x%x, s%d' % (S1 + 2, 448 * 8192, S1 + 2))
    g('s_cselect_b32 s%d, 8192, s%d' % (sTS, sTS))
    g('s_cselect_b32 s%d, s%d, s%d' % (sTC, sT1, sTC))
    g('s_cselect_b32 s%d, s%d, s%d' % (sT0, sW, sT0))
    g('s_and_b32 s%d, s%d, 0xffff' % (S1 + 1, S1 + 1))
    g('s_mov_b32 s%d, 0x20000' % (S1 + 3))
    F = HX // 2
    g('s_and_b32 s%d, s%d, %d' % (sRL, sRT, 16 // F - 1))
    g('s_lshl_b32 s%d, s%d, 1' % (sTI, sRL))
    g('s_add_u32 s%d, s%d, s%d' % (sTI, sTI, sT0))
    def wtouch(row0, nrow):
        nrow *= F
        if nrow > 16:
            a_ = nrow // F // 2
            wtouch(row0, a_); wtouch(row0 + 32 * a_, nrow // F - a_)
            return
        g('s_mul_i32 s%d, s%d, %d' % (sT0, sTI, nrow))
        g('s_add_u32 s%d, s%d, %d' % (sT0, sT0, row0))
        g('v_min_u32 v%d, %d, v%d' % (t0, 4 * nrow - 1, L))
        g('v_lshrrev_b32 v%d, 2, v%d' % (t1, t0))
        g('v_add_u32 v%d, s%d, v%d' % (t1, sT0, t1))
        g('v_mul_u32_u24 v%d, s%d, v%d' % (t1, sTS, t1))
        g('v_and_b32 v%d, 3, v%d' % (t0, t0))
        g('v_lshl_add_u32 v%d, v%d, 7, v%d' % (t0, t0, t1))
        g('s_nop 0'); g.raw('    buffer_load_dword v26, v%d, s[%d:%d], s%d offen' % (t0, S1, S1 + 3, sTC)); g.pos += 1; g.vm.append((None, {'v26'}, False))
    if OPT['tw0']: wtouch(0, OPT['tw0'])
    pre = []
    P = pre.append
    P('v_and_b32 v%d, 31, v%d' % (N, L))
    P('v_lshrrev_b32 v%d, 5, v%d' % (HH, L))
    P('v_bfe_u32 v%d, v%d, 2, 2' % (R_, L))
    P('v_and_b32 v%d, 3, v%d' % (C_, L))
    P('v_bfe_u32 v%d, v%d, 4, 1' % (GP, L))
    P('v_lshrrev_b32 v%d, 1, v%d' % (t0, C_))
    P('v_and_b32 v%d, 1, v%d' % (t1, C_))
    P('v_lshl_or_b32 v%d, v%d, 1, v%d' % (SW, t1, t0))
    P('v_lshl_add_u32 v%d, v%d, 3, v%d' % (t2, HH, R_))
    P('v_lshlrev_b32 v%d, 9, v%d' % (t3, t2))
    P('v_lshl_add_u32 v%d, v%d, 5, v%d' % (t3, GP, t3))
    P('v_lshl_add_u32 v%d, v%d, 3, v%d' % (t3, SW, t3))
    for i in range(4):
        P('v_xor_b32 v%d, %d, v%d' % (t4, i, R_))
        P('v_lshl_add_u32 v%d, v%d, 6, v%d' % (VB[0][i], t4, t3))
        P('v_add_u32 v%d, 0x10000, v%d' % (VB[1][i], VB[0][i]))
        P('v_add_u32 v%d, 0x20000, v%d' % (VB[2][i], VB[0][i]))
    P('v_mul_u32_u24 v%d, 224, v%d' % (t3, t2))
    P('v_mul_u32_u24 v%d, 8320, v%d' % (t4, GP))
    P('v_add_u32 v%d, v%d, v%d' % (t3, t3, t4))
    P('v_lshl_add_u32 v%d, v%d, 3, v%d' % (VG[0], SW, t3))
    P('v_add_u32 v%d, 0x10000, v%d' % (VG[1], VG[0]))
    P('v_add_u32 v%d, 0x20000, v%d' % (VG[2], VG[0]))
    P('v_lshl_add_u32 v%d, v%d, 1, v%d' % (t0, GP, t0))
    P('v_lshl_add_u32 v%d, v%d, 2, v%d' % (t0, t1, t0))
    P('v_lshlrev_b32 v%d, 3, v%d' % (t0, t0))
    P('v_lshl_add_u32 v%d, v%d, 7, v%d' % (t0, t2, t0))
    P('v_lshrrev_b32 v%d, 1, v%d' % (t1, R_))
    for i in range(2):
        P('v_xor_b32 v%d, %d, v%d' % (t4, i, t1))
        P('v_lshl_add_u32 v%d, v%d, 6, v%d' % (OB[0][i], t4, t0))
        P('v_add_u32 v%d, 0x10000, v%d' % (OB[1][i], OB[0][i]))
        P('v_add_u32 v%d, 0x20000, v%d' % (OB[2][i], OB[0][i]))
    P('v_and_b32 v%d, 0x13, v%d' % (t0, N))
    P('v_bfe_u32 v%d, v%d, 2, 1' % (t1, N))
    P('v_lshl_or_b32 v%d, v%d, 3, v%d' % (t0, t1, t0))
    P('v_bfe_u32 v%d, v%d, 3, 1' % (t1, N))
    P('v_lshl_or_b32 v%d, v%d, 2, v%d' % (t0, t1, t0))
    P('v_and_b32 v%d, 15, v%d' % (t1, t0))
    P('v_xor_b32 v%d, v%d, v%d' % (t1, t1, HH))
    P('v_lshlrev_b32 v%d, 9, v%d' % (t0, t0))
    for i in range(8):
        P('v_xor_b32 v%d, %d, v%d' % (t4, 2 * i, t1))
        P('v_lshl_add_u32 v%d, v%d, 4, v%d' % (KB[0][i], t4, t0))
        P('v_add_u32 v%d, 0x10000, v%d' % (KB[1][i], KB[0][i]))
        P('v_add_u32 v%d, 0x20000, v%d' % (KB[2][i], KB[0][i]))
    P('v_lshlrev_b32 v%d, 4, v%d' % (VL16, L))
    P('v_mov_b32 v%d, 0' % VL)
    XR = [[NEGM + 4 * s + i for i in range(4)] for s in range(2)]
    P('v_bfe_u32 v%d, v%d, 1, 3' % (t0, N))
    P('v_xor_b32 v%d, v%d, v%d' % (t0, t0, HH))
    P('v_lshlrev_b32 v%d, 7, v%d' % (t1, N))
    P('v_add_u32 v%d, s%d, v%d' % (t1, sQB, t1))
    P('v_add_u32 v%d, 0x8000, v%d' % (t1, t1))
    for i in range(4):
        P('v_xor_b32 v%d, %d, v%d' % (t4, 2 * i, t0))
        P('v_lshl_add_u32 v%d, v%d, 4, v%d' % (XR[0][i], t4, t1))
        P('v_add_u32 v%d, 0x10000, v%d' % (XR[1][i], XR[0][i]))
    P('v_and_b32 v%d, 7, v%d' % (t0, L))
    P('v_lshlrev_b32 v%d, 2, v%d' % (t1, GP))
    P('v_xor_b32 v%d, v%d, v%d' % (t0, t0, t1))
    P('v_lshlrev_b32 v%d, 4, v%d' % (t0, t0))
    P('v_lshrrev_b32 v%d, 3, v%d' % (t1, L))
    P('v_mul_u32_u24 v%d, 896, v%d' % (t1, t1))
    P('v_add_u32 v%d, v%d, v%d' % (t0, t0, t1))
    P('s_mul_i32 s%d, s%d, %d' % (sOWO, sH, 256 * 896))
    P('s_mul_i32 s%d, s%d, %d' % (sT2, sW, 64 * 896))
    P('s_add_u32 s%d, s%d, s%d' % (sOWO, sOWO, sT2))
    for i in range(8):
        P('v_add_u32 v%d, %d, v%d' % (DV3[i], 8 * i * 896 - 1024 * (i & 3), t0))
    for i in range(4): P('v_mov_b32 v%d, 0' % T[4 + i])
    XA = OPT['xa']
    npre = (len(pre) + 4 * XA - 1) // (4 * XA)
    def xdma(cb):
        g('s_add_u32 m0, s%d, %d' % (sQB, (cb // 2 + 1) * 32768 + (cb & 1) * 4096))
        for gi in range(4):
            g('buffer_load_dwordx4 v%d, s[%d:%d], s%d offen offset:%d lds' % (XV[gi], SX, SX + 3, sT4, 1024 * gi), tag=('x', cb))
            for s in pre[:npre]: g(s)
            del pre[:npre]
        g('s_add_u32 s%d, s%d, 128' % (sT4, sT4))
    for cb in range(XA): xdma(cb)
    assert not pre
    st(2)
    g('s_cmp_lt_u32 s%d, 2' % sW)
    g('s_cbranch_scc0 L1_w23')
    g.fence()
    srd(g, SKV, 6, 8 * 2048 * 512)
    g('s_mov_b32 s%d, %d' % (sST1, 32 * 8192))
    g('s_lshl_b32 s%d, s%d, 20' % (sOKV, sKVH))
    g('s_add_u32 s%d, s%d, %d' % (sOKV, sOKV, 1536 * 512))
    g('s_lshl_b32 s%d, s%d, 9' % (sO1, sH))
    g('s_lshl_b32 s%d, s%d, 4' % (sT2, sW))
    g('v_add_u32 v%d, s%d, v%d' % (t0, sT2, HH))
    for par in range(2):
        g('v_add_u32 v%d, %d, v%d' % (t1, 2 * par, HH))
        g('v_lshlrev_b32 v%d, 2, v%d' % (t1, t1))
        g('v_xor_b32 v%d, v%d, v%d' % (t1, t1, N))
        g('v_lshlrev_b32 v%d, 4, v%d' % (t1, t1))
        g('v_lshl_add_u32 v%d, v%d, 13, v%d' % (t1, t0, t1))
        for i in range(par, 8, 2):
            g('v_add_u32 v%d, %d, v%d' % (DV1[i], 2 * i * 8192 - 1024 * (i & 3), t1))
    g('v_xor_b32 v%d, v%d, v%d' % (t2, HH, N))
    g('v_lshlrev_b32 v%d, 9, v%d' % (t0, t0))
    for i in range(8):
        g('v_xor_b32 v%d, %d, v%d' % (t1, 2 * i, t2))
        g('v_lshl_add_u32 v%d, v%d, 4, v%d' % (t1, t1, t0))
        g('v_add_u32 v%d, %d, v%d' % (DV2[i], 1024 * i - 1024 * (i & 3), t1))
    g('s_branch L1_wj')
    g.label('L1_w23')
    g.fence()
    g('s_cmp_eq_u32 s%d, 2' % sW)
    g('s_cselect_b32 s%d, 0, 8' % sT0)
    srd(g, SKV, 8, 8 * 2048 * 512)
    g('s_mov_b32 s%d, %d' % (sST1, 32 * 3584))
    g('s_lshl_b32 s%d, s%d, 20' % (sOKV, sKVH))
    g('s_add_u32 s%d, s%d, %d' % (sOKV, sOKV, 1536 * 512 - 16384))
    g('s_mul_i32 s%d, s%d, 224' % (sO1, sH))
    g('s_and_b32 s%d, s%d, 1' % (sT2, sW))
    g('s_lshl_b32 s%d, s%d, 4' % (sT2, sT2))
    g('s_mov_b32 s%d, 4682' % sIDX)
    g('v_mov_b32 v%d, 0x%x' % (t4, OOB))
    g('v_subrev_u32 v%d, s%d, v%d' % (t3, sT0, L))
    for i in range(8):
        g('v_add_u32 v%d, %d, v%d' % (t0, 64 * i, t3))
        g('v_cmp_gt_u32 vcc, 448, v%d' % t0)
        g('v_mul_u32_u24 v%d, s%d, v%d' % (t1, sIDX, t0))
        g('v_lshrrev_b32 v%d, 16, v%d' % (t1, t1))
        g('v_mul_u32_u24 v%d, %d, v%d' % (t1, 3584 - 224, t1))
        g('v_lshl_add_u32 v%d, v%d, 4, v%d' % (t1, t0, t1))
        g('v_subrev_u32 v%d, %d, v%d' % (t1, 1024 * (i & 3), t1))
        g('v_cndmask_b32 v%d, v%d, v%d, vcc' % (DV1[i], t4, t1))
    g('v_add_u32 v%d, s%d, v%d' % (t0, sT2, HH))
    for par in range(2):
        g('v_add_u32 v%d, %d, v%d' % (t1, 2 * par, HH))
        g('v_lshlrev_b32 v%d, 2, v%d' % (t1, t1))
        g('v_xor_b32 v%d, v%d, v%d' % (t1, t1, N))
        g('v_lshlrev_b32 v%d, 4, v%d' % (t1, t1))
        g('v_lshl_add_u32 v%d, v%d, 9, v%d' % (t1, t0, t1))
        for i in range(par, 8, 2):
            g('v_add_u32 v%d, %d, v%d' % (DV2[i], 1024 * i - 1024 * (i & 3), t1))
    g.label('L1_wj')
    g.fence()
    g('s_nop 1')

    def dma_items(stage):
        if stage < 14: dv, s, so, adv = DV1, S1, sO1, 's_add_u32 s%d, s%d, s%d' % (sO1, sO1, sST1)
        elif stage < 18: dv, s, so, adv = DV3, SWD, sOWD, ('s_add_u32 s%d, s%d, 256' % (sOWD, sOWD) if stage != 16 else 's_add_u32 s%d, s%d, s%d' % (sOWD, sOWD, sAD3))
        elif stage < 35: dv, s, so, adv = DV2, SKV, sOKV, 's_add_u32 s%d, s%d, 0x4000' % (sOKV, sOKV)
        else: dv, s, so, adv = DV3, SWO, sOWO, ['s_add_u32 s%d, s%d, 128' % (sOWO, sOWO), 's_cmp_eq_u32 s%d, s%d' % (sOWO, sWOE),
                                                's_cselect_b32 s%d, 896, 0' % sT2, 's_sub_u32 s%d, s%d, s%d' % (sOWO, sOWO, sT2)]
        items = []
        for i in range(8):
            def f(i=i):
                g('buffer_load_dwordx4 v%d, s[%d:%d], s%d offen offset:%d%s lds' % (dv[i], s, s + 3, so, 1024 * (i & 3), DFL), tag=('st', stage))
                if i == 7:
                    for a_ in ([adv] if isinstance(adv, str) else adv): g(a_)
            def m(i=i):
                g('s_add_u32 m0, s%d, %d' % (sQB, (stage % 5) * 32768 + 1024 * i))
            items.append((m if i % 4 == 0 else None, f))
        return items
    def dma_now(stage):
        for m, f in dma_items(stage):
            if m: m()
            f()
    st(2)
    srd(g, SWO, 12, 4096 * 896)
    srd(g, SWD, 20, 1792 * 896)
    srd(g, SWS, 26, WS_SIZE)
    srd(g, SDBG, 24, 256)
    srd(g, SOUT, 22, 2048 * 896)
    g('s_or_b32 s%d, s2, s%d' % (sT0, sW))
    g('s_cmp_lg_u32 s%d, 0' % sT0)
    g('s_cbranch_scc1 L1_non')
    g.raw('    s_memrealtime s[74:75]')
    g.raw('    v_mov_b32 v%d, 0' % t1)
    g.raw('    s_waitcnt lgkmcnt(0)')
    g.raw('    s_or_b32 s74, s74, 1')
    g.raw('    v_mov_b32 v%d, s74' % t0)
    g.raw('    buffer_store_dword v%d, v%d, s[%d:%d], 0 offen sc1' % (t0, t1, SDBG, SDBG + 3))
    g.label('L1_non')
    g.vm.append(('non', set(), True))
    g.vm.pop()
    g('s_mov_b32 s%d, 0x3f803f80' % sONE)
    g('s_mov_b32 s%d, 0xffff0000' % sMASK)
    g('s_mov_b32 s%d, %s' % (sTHR, f2h(TTHR)))
    g('s_lshl_b32 s%d, s%d, 6' % (sSP, sH))
    g('s_add_u32 s%d, s%d, s%d' % (sSP, sSP, sT3))
    g('s_mul_i32 s%d, s%d, 28672' % (sSP, sSP))
    if SP_BASE: g('s_add_u32 s%d, s%d, 0x%x' % (sSP, sSP, SP_BASE))
    g('s_add_u32 s%d, s%d, 28672' % (sSPE, sSP))
    g('s_add_u32 s%d, s%d, 0x%x' % (sYP, sSP, YP_OFF))
    g('s_add_u32 s%d, s%d, 896' % (sWOE, sOWO))
    g('s_mul_i32 s%d, s%d, 37' % (sT0, sH))
    g('s_lshr_b32 s%d, s%d, 8' % (sT0, sT0))
    g('s_mul_i32 s%d, s%d, 7' % (sT0, sT0))
    g('s_sub_u32 s%d, s%d, s%d' % (sT0, sH, sT0))
    g('s_lshl_b32 s%d, s%d, 7' % (sT1, sT0))
    g('s_add_u32 s%d, s%d, s%d' % (sOWO, sOWO, sT1))
    g('s_lshl_b32 s%d, s%d, 12' % (sT1, sT0))
    g('s_add_u32 s%d, s%d, s%d' % (sSP, sSP, sT1))
    g('s_mul_i32 s%d, s%d, %d' % (sOWD, sH, 112 * 896))
    g('s_and_b32 s%d, s%d, 1' % (sT1, sW))
    g('s_mul_i32 s%d, s%d, %d' % (sT1, sT1, 64 * 896))
    g('s_add_u32 s%d, s%d, s%d' % (sOWD, sOWD, sT1))
    g('s_lshr_b32 s%d, s%d, 1' % (sT1, sW))
    g('s_lshl_b32 s%d, s%d, 29' % (sAD3, sT1))
    g('s_add_u32 s%d, s%d, 256' % (sAD3, sAD3))
    g('s_lshl_b32 s%d, s%d, 7' % (sT1, sT1))
    g('s_add_u32 s%d, s%d, s%d' % (sOWD, sOWD, sT1))
    g('s_lshl_b32 s%d, s%d, 4' % (sFP, sT3))
    g('s_add_u32 s%d, s%d, s%d' % (sFP, sFP, sH))
    g('s_mul_i32 s%d, s%d, %d' % (sFP, sFP, FST))
    g('s_add_u32 s%d, s%d, 0x%x' % (sFP, sFP, FL_BASE))
    g('s_lshr_b32 s%d, s2, 3' % sI)
    g('s_sub_i32 s%d, s%d, 4' % (sCT, sI))
    g('s_max_i32 s%d, s%d, 0' % (sCT, sCT))
    g('s_mul_i32 s%d, s%d, 4682' % (sT0, sCT))
    g('s_lshr_b32 s%d, s%d, 16' % (sT0, sT0))
    g('s_mul_i32 s%d, s%d, 14' % (sT1, sT0))
    g('s_sub_u32 s%d, s%d, s%d' % (sCT, sCT, sT1))
    g('s_and_b32 s%d, s%d, 1' % (sT0, sT0))
    g('s_and_b32 s%d, s2, 7' % sT1)
    g('s_lshl_b32 s%d, s%d, 1' % (sT1, sT1))
    g('s_add_u32 s%d, s%d, s%d' % (sT0, sT0, sT1))
    g('s_lshl_b32 s%d, s%d, 2' % (sRO, sT0))
    g('s_add_u32 s%d, s%d, s%d' % (sRO, sRO, sW))
    g('s_mul_i32 s%d, s%d, %d' % (sFC, sRO, 16 * FST))
    g('s_add_u32 s%d, s%d, 0x%x' % (sFC, sFC, FL_BASE))
    g('s_mul_i32 s%d, s%d, 14' % (sPB, sRO))
    g('s_add_u32 s%d, s%d, s%d' % (sPB, sPB, sCT))
    g('s_lshl_b32 s%d, s%d, 11' % (sPB, sPB))
    if SP_BASE: g('s_add_u32 s%d, s%d, 0x%x' % (sPB, sPB, SP_BASE))
    g('s_mov_b32 s%d, 0xffff' % sPEND)
    g('s_mov_b32 s%d, 0' % sSPIN)
    g('s_mul_i32 s%d, s%d, %d' % (sXO, sRO, 32 * 896))
    g('s_lshl_b32 s%d, s%d, 6' % (sT0, sCT))
    g('s_add_u32 s%d, s%d, s%d' % (sXO, sXO, sT0))
    g('s_add_u32 s%d, s%d, 0x%x' % (sYB, sPB, YP_OFF))
    st(2)
    A0, A1, A2, A3 = T[4:8]
    def xread(cb):
        g.wait_tag(('x', cb), False)
        o = (cb // 2) * 32768 + (cb & 1) * 4096
        for tt in range(4):
            g('ds_read_b128 %s, v%d offset:%d' % (vr(X + 16 * cb + 4 * tt, 4), XR[o >> 16][tt], o & 0xffff))
    def stats(cb):
        for d in range(16):
            r = X + 16 * cb + d
            g('v_dot2c_f32_bf16 v%d, s%d, v%d' % ((A0, A1)[d & 1], sONE, r))
            g('v_dot2c_f32_bf16 v%d, v%d, v%d' % ((A2, A3)[d & 1], r, r))
    nx = XA; nd = 0
    def more(done):
        nonlocal nx, nd
        if nx < 7: xdma(nx); nx += 1
        if nx == 7:
            while nd < OPT['ndp'] and 2 * nd <= done: dma_now(nd); nd += 1
    more(0)
    xread(0)
    for cb in range(7):
        if cb < 6: more(cb)
        if cb < 6: xread(cb + 1)
        if cb == 0: st(2)
        if cb == 6: more(6); st(2)
        stats(cb)
    assert nx == 7 and nd == OPT['ndp']
    g('v_add_f32 v%d, v%d, v%d' % (A0, A0, A1))
    g('v_add_f32 v%d, v%d, v%d' % (A2, A2, A3))
    g('v_mov_b32 v%d, v%d' % (A1, A0))
    g('v_mov_b32 v%d, v%d' % (A3, A2))
    g('v_permlane32_swap_b32 v%d, v%d' % (A0, A1))
    g('v_permlane32_swap_b32 v%d, v%d' % (A2, A3))
    g('v_add_f32 v%d, v%d, v%d' % (A0, A0, A1))
    g('v_add_f32 v%d, v%d, v%d' % (A2, A2, A3))
    g('v_mul_f32 v%d, %s, v%d' % (A0, f2h(1.0 / 448), A0))
    g('v_mul_f32 v%d, %s, v%d' % (A2, f2h(1.0 / 448), A2))
    g('v_fma_f32 v%d, -v%d, v%d, v%d' % (A2, A0, A0, A2))
    g('v_max_f32 v%d, 0, v%d' % (A2, A2))
    g('v_add_f32 v%d, %s, v%d' % (A2, f2h(1e-5), A2))
    g('v_rsq_f32 v%d, v%d' % (A2, A2))
    g('v_mul_f32 v%d, %s, v%d' % (VA, f2h(CS), A2))
    g('v_mul_f32 v%d, -v%d, v%d' % (VBB, A0, VA))

    def norm_items(t):
        its = []
        for d in range(4):
            r = X + 4 * t + d
            a, b = T[2 * (d & 1)], T[2 * (d & 1) + 1]
            its += ['v_lshlrev_b32 v%d, 16, v%d' % (a, r),
                    'v_and_b32 v%d, s%d, v%d' % (b, sMASK, r),
                    'v_fma_f32 v%d, v%d, v%d, v%d' % (a, a, VA, VBB),
                    'v_fma_f32 v%d, v%d, v%d, v%d' % (b, b, VA, VBB),
                    'v_cvt_pk_bf16_f32 v%d, v%d, v%d' % (r, a, b)]
        return its
    g.wait_tag(('st', 0), False)
    g('s_barrier')
    st(3)

    M = []
    def tr(base, off): return [('ds_read_b64_tr_b16', 0, base, off[0]), ('ds_read_b64_tr_b16', 2, base, off[1])]
    idx = {}
    for s in range(14):
        bs, so = slot_off(s)
        for tt in range(2):
            t = 2 * s + tt
            idx[('p1', t)] = len(M)
            mq = []; mg = []
            for n in range(8):
                o = so + tt * 8192 + (n >> 2) * 256
                mq.append((s, tr(VB[bs][n & 3], (o, o + 2048)),
                          lambda af, n=n, t=t: MF(ar(16 * n, 16), vr(af, 4), vr(X + 4 * t, 4), ar(16 * n, 16) if t else '0')))
            for n in range(7):
                o = so + 16384 + 16 * tt * 224 + 32 * n
                mg.append((s, tr(VG[bs], (o, o + 4 * 224)),
                          lambda af, n=n, t=t: MF(ar(128 + 16 * n, 16), vr(af, 4), vr(X + 4 * t, 4), ar(128 + 16 * n, 16) if t else '0')))
            M += (mg + mq) if t == 27 else (mq + mg)
    kyp = len(M); idx['yp'] = kyp
    order = [(ct, ks) for ks in range(7) for ct in range(3)] + [(ct, ks) for ct in range(3, 14) for ks in range(7)]
    yfirst = {}; ylast = {}; hfirst = {}
    for ct, ks in order:
        s = 14 + ct // 4; bs, so = slot_off(s)
        o = so + ((ct >> 1) & 1) * 16384 + ks * 2048
        acc = YB[ct & 3]
        yfirst.setdefault(ct, len(M)); ylast[ct] = len(M); hfirst.setdefault(ks, len(M))
        M.append((s, tr(OB[bs][ct & 1], (o, o + 512)),
                  lambda af, acc=acc, ks=ks: MF(vr(acc, 16), vr(af, 4), vr(HF[ks], 4), vr(acc, 16) if ks else '0')))
    A0S = 18
    def add_qk(j):
        s = A0S + j; bs, so = slot_off(s); S = SB[j & 1]
        idx[('qk', j)] = len(M)
        for t in range(16):
            c = vr(S, 16) if t else ('0' if j < 2 else vr(NEGM, 16))
            M.append((s, [('ds_read_b128', 0, KB[bs][t & 7], so + (t >> 3) * 256)],
                      lambda af, t=t, S=S, c=c: MF(vr(S, 16), vr(af, 4), vr(Q + 4 * t, 4), c)))
    def add_pv(j):
        s = A0S + 1 + j; bs, so = slot_off(s)
        idx[('pv', j)] = len(M)
        for tt in range(2):
            for n in range(8):
                o = so + 16384 + tt * 8192 + (n >> 2) * 256
                c = '0' if (j == 0 and tt == 0) else ar(16 * n, 16)
                M.append((s, tr(VB[bs][n & 3], (o, o + 2048)),
                          lambda af, n=n, tt=tt, c=c: MF(ar(16 * n, 16), vr(af, 4), vr(PB[tt], 4), c)))
    add_qk(0)
    for j in range(15):
        add_qk(j + 1); add_pv(j)
    add_pv(15)
    for u in range(7):
        s = 35 + u; bs, so = slot_off(s)
        idx[('op', u)] = len(M)
        for t in range(16):
            for n in range(2):
                o = so + t * 2048
                acc = SACC[u & 1] + 16 * n
                M.append((s, tr(OB[bs][n], (o, o + 512)),
                          lambda af, acc=acc, t=t: MF(vr(acc, 16), vr(af, 4), vr(OF + 4 * t, 4), vr(acc, 16) if t else '0')))
    kt = len(M); o0 = idx[('op', 0)]
    def yq(i): return 128 + (64 + 4 * i) % 128
    for i in range(32):
        M.append((41, [], lambda af, i=i: MF(vr(YACC, 16), vr(IA[i & 1], 4), ar(yq(i), 4), vr(YACC, 16) if i else '0')))
    for i in range(32):
        M.append((41, [], lambda af, i=i: MF(vr(SA, 16), vr(IA[i & 1], 4), ar(4 * i, 4), vr(SA, 16) if i else '0')))
    NM = len(M)
    gaps = [[] for _ in range(NM + 1)]
    first = {}; last = {}
    for k, m in enumerate(M):
        first.setdefault(m[0], k); last[m[0]] = k
    bar_at = {}
    for s in range(NST - 1):
        bar_at[last[s] + 1 - OPT['barpos']] = s
    for t in range(27):
        k0 = idx[('p1', t)]
        spread(gaps, norm_items(t + 1), k0, k0 + 13)
    TA_, TB_, TD_ = 24, 25, 26
    def touch(n, srdn, so, flags=''):
        return ['v_min_u32 v%d, %d, v%d' % (TA_, (n - 1) * 16, VL16),
                'v_lshl_add_u32 v%d, v%d, 3, v%d' % (TA_, TA_, TB_),
                ('raw', 'buffer_load_dword v%d, v%d, s[%d:%d], %s offen%s' % (TD_, TA_, srdn, srdn + 3, so, flags))]
    if OPT['tw1']: gaps[OPT['tw1']] += [('call', lambda: wtouch(32 * OPT['tw0'], 14 - OPT['tw0']))]
    if OPT['twd'] >= 0:
        gaps[idx[('p1', OPT['twd'])] + 3] += ['s_lshl_b32 s%d, s%d, 2' % (sT0, sRL), 's_add_u32 s%d, s%d, s%d' % (sT0, sT0, sW), 's_mul_i32 s%d, s%d, %d' % (sT0, sT0, 1568 * F),
                     's_mul_i32 s%d, s%d, %d' % (sT1, sH, 112 * 896), 's_add_u32 s%d, s%d, s%d' % (sT0, sT0, sT1),
                     'v_mov_b32 v%d, 0' % TB_] + touch(13 * F, SWD, 's%d' % sT0)
    if OPT['tkv'] >= 0:
        gaps[idx[('p1', OPT['tkv'])] + 3] += ['s_lshl_b32 s%d, s%d, 1' % (sT0, sRL), 's_and_b32 s%d, s%d, 1' % (sT1, sH), 's_add_u32 s%d, s%d, s%d' % (sT0, sT0, sT1),
                     's_lshl_b32 s%d, s%d, 1' % (sT0, sT0), 's_and_b32 s%d, s%d, 1' % (sT1, sW), 's_add_u32 s%d, s%d, s%d' % (sT0, sT0, sT1),
                     's_mul_i32 s%d, s%d, %d' % (sT0, sT0, 4096 * F), 's_lshl_b32 s%d, s%d, 20' % (sT1, sKVH), 's_add_u32 s%d, s%d, s%d' % (sT0, sT0, sT1),
                     'v_mov_b32 v%d, 0x%x' % (TB_, 1536 * 512)] + touch(32 * F, SKV, 's%d' % sT0)
    if OPT['two'] >= 0:
        gaps[idx[('qk', OPT['two'])] + 3] += ['s_lshl_b32 s%d, s%d, 2' % (sT0, sRL), 's_add_u32 s%d, s%d, s%d' % (sT0, sT0, sW), 's_mul_i32 s%d, s%d, %d' % (sT0, sT0, 3584 * F),
                     's_mul_i32 s%d, s%d, %d' % (sT1, sH, 256 * 896), 's_add_u32 s%d, s%d, s%d' % (sT0, sT0, sT1),
                     'v_mov_b32 v%d, 0' % TB_] + touch(28 * F, SWO, 's%d' % sT0)
    if OPT.get('tc2', -1) >= 0:
        gaps[idx[('qk', OPT['tc2'])] + 5] += ['s_getpc_b64 s[74:75]', ('label', 'L1_pc2'), 's_lshr_b32 s%d, s2, 3' % sT0, 's_lshl_b32 s%d, s%d, 2' % (sT0, sT0),
                     's_add_u32 s%d, s%d, s%d' % (sT0, sT0, sW), 's_lshl_b32 s%d, s%d, 9' % (sT0, sT0),
                     'v_min_u32 v%d, 48, v%d' % (TA_, VL16), 'v_lshlrev_b32 v%d, 3, v%d' % (TA_, TA_), 'v_add_u32 v%d, s%d, v%d' % (TA_, sT0, TA_),
                     'v_min_u32 v%d, L1_last-L1_pc2, v%d' % (TA_, TA_), 'v_mov_b32 v%d, s75' % TB_, 'v_add_co_u32 v%d, vcc, s74, v%d' % (TA_, TA_),
                     'v_addc_co_u32 v%d, vcc, 0, v%d, vcc' % (TB_, TB_), ('raw', 'global_load_dword v%d, v[%d:%d], off' % (TD_, TA_, TB_))]
    def conv_items(dst, t, tmp):
        its = []
        base = 16 * (t >> 1) + 8 * (t & 1)
        for d in range(4):
            a, b = tmp[2 * (d & 1)], tmp[2 * (d & 1) + 1]
            its += ['v_accvgpr_read_b32 v%d, a%d' % (a, base + 2 * d),
                    'v_accvgpr_read_b32 v%d, a%d' % (b, base + 2 * d + 1),
                    'v_cvt_pk_bf16_f32 v%d, v%d, v%d' % (dst + 4 * t + d, a, b)]
        return its
    def h_items(n):
        its = []
        base = 128 + 16 * n
        for d in range(4):
            a, b, c, e = T[4 * (d & 1):4 * (d & 1) + 4]
            its += ['v_accvgpr_read_b32 v%d, a%d' % (a, base + 2 * d), 'v_accvgpr_read_b32 v%d, a%d' % (b, base + 8 + 2 * d),
                    'v_accvgpr_read_b32 v%d, a%d' % (c, base + 2 * d + 1), 'v_accvgpr_read_b32 v%d, a%d' % (e, base + 8 + 2 * d + 1),
                    'v_mul_f32 v%d, v%d, v%d' % (a, a, b), 'v_mul_f32 v%d, v%d, v%d' % (c, c, e),
                    'v_cvt_pk_bf16_f32 v%d, v%d, v%d' % (HF[n] + d, a, c)]
        return its
    direct = [int(x) for x in str(OPT['direct']).split(',')]
    parked = [ct for ct in range(14) if ct not in direct]
    assert len(parked) <= 8
    def yst(src, ct, q):
        return ('seq', ['s_add_u32 s%d, s%d, %d' % (sT0, sYP, (ct >> 1) * 4096),
                ('y', 'buffer_store_dwordx4 %s, v%d, s[%d:%d], s%d offen offset:%d%s' % (src, VL16, SWS, SWS + 3, sT0, (ct & 1) * 2048 + q * 1024, STF))])
    def yepi(ct):
        acc = YB[ct & 3]; its = []
        for d in range(8):
            if ct in direct:
                its.append('v_cvt_pk_bf16_f32 v%d, v%d, v%d' % (acc + d, acc + 2 * d, acc + 2 * d + 1))
                if d & 3 == 3: its.append(yst(vr(acc + d - 3, 4), ct, d >> 2))
            else:
                its += ['v_cvt_pk_bf16_f32 v%d, v%d, v%d' % (T[4 + (d & 3)], acc + 2 * d, acc + 2 * d + 1)]
                if d & 1: its += ['v_accvgpr_write_b32 a%d, v%d' % (128 + 8 * parked.index(ct) + d - 1, T[4 + ((d - 1) & 3)]),
                                  'v_accvgpr_write_b32 a%d, v%d' % (128 + 8 * parked.index(ct) + d, T[4 + (d & 3)])]
        return its
    k27 = idx[('p1', 27)]; kq0 = idx[('qk', 0)]
    qh = [(k27 + n + 2, hfirst[n], x) for n in range(7) for x in h_items(n)]
    def ydead(ct): return yfirst[ct + 4] if ct + 4 < 14 else (kq0 if (ct & 3) == 0 else idx[('qk', 1)] if (ct & 3) == 1 else idx[('qk', 1)] + 5)
    qe = [(ylast[ct] + 2, ydead(ct), x) for ct in range(14) for x in yepi(ct)]
    qq = [(kyp + 2, kq0 + t, x) for t in range(16) for x in conv_items(Q, t, T[0:4])]
    k = k27
    while qh or qe or qq:
        n = OPT['vq'] + (1 if qh else 0)
        while n > 0 or (qh and qh[0][1] <= k + 1) or (qe and qe[0][1] <= k + 1) or (qq and qq[0][1] <= k + 1):
            q_ = None
            if qh: q_ = qh if qh[0][0] <= k else None
            elif qq and qq[0][1] <= k + 2: q_ = qq
            elif qe and qe[0][0] <= k: q_ = qe
            elif qq: q_ = qq
            if not q_: break
            e, dl, x = q_.pop(0)
            assert e <= k < dl, (e, k, dl, x)
            gaps[k].append(x); n -= 1
        k += 1
    sys.stderr.write('conv sched ends at qk0%+d\n' % (k - kq0))
    kk = kq0 + 12
    for ct in parked:
        for q in range(2):
            gaps[kk].append(yst(ar(128 + 8 * parked.index(ct) + 4 * q, 4), ct, q)); kk += OPT['ypace']
    def exp_items(S, lo, P, sub=False):
        its = []
        for i in range(lo, lo + 8, 2):
            if sub:
                its += ['v_sub_f32 v%d, v%d, v%d' % (S + i, S + i, VMX), 'v_sub_f32 v%d, v%d, v%d' % (S + i + 1, S + i + 1, VMX)]
            its += ['v_exp_f32 v%d, v%d' % (S + i, S + i), 'v_exp_f32 v%d, v%d' % (S + i + 1, S + i + 1),
                    'v_add_f32 v%d, v%d, v%d' % (VL, VL, S + i), 'v_add_f32 v%d, v%d, v%d' % (VL, VL, S + i + 1),
                    'v_cvt_pk_bf16_f32 v%d, v%d, v%d' % (P + (i - lo) // 2, S + i, S + i + 1)]
        return its
    def max_items(S, dst):
        its = ['v_max3_f32 v%d, v%d, v%d, v%d' % (dst, S, S + 1, S + 2)]
        for i in range(3, 15, 2):
            its.append('v_max3_f32 v%d, v%d, v%d, v%d' % (dst, dst, S + i, S + i + 1))
        its.append('v_max_f32 v%d, v%d, v%d' % (dst, dst, S + 15))
        return its
    assert k <= idx[('qk', 1)] + 2
    vccbusy = set()
    for j in range(16):
        S = SB[j & 1]
        kb = idx[('pv', j)]
        if j == 0:
            ka = idx[('qk', 1)]
            its = max_items(S, VMX) + ['v_mov_b32 v%d, v%d' % (T[4], VMX), 'v_permlane32_swap_b32 v%d, v%d' % (VMX, T[4]),
                                       'v_max_f32 v%d, v%d, v%d' % (VMX, VMX, T[4])]
            spread(gaps, its, ka + 2, ka + 5)
            spread(gaps, exp_items(S, 0, PB[0], True), ka + 6, ka + 14)
            spread(gaps, exp_items(S, 8, PB[1], True), ka + 15, kb + 6)
            its = ['v_sub_f32 v%d, v%d, v%d' % (SB[1] + i, SB[1] + i, VMX) for i in range(16)]
            its += ['v_sub_f32 v%d, 0, v%d' % (NEGM + i, VMX) for i in range(16)]
            spread(gaps, its, kb + 3, kb + 11)
            spread(gaps, max_items(SB[1], T[5]), kb + 12, kb + 14)
        elif j < 15:
            ka = idx[('qk', j + 1)]
            spread(gaps, exp_items(S, 0, PB[0]), ka, ka + 9)
            spread(gaps, exp_items(S, 8, PB[1]), ka + 10, kb + 5)
            spread(gaps, max_items(SB[(j + 1) & 1], T[5]), kb + 6, kb + 14)
        else:
            gaps[kb - 1] += exp_items(S, 0, PB[0])
            spread(gaps, exp_items(S, 8, PB[1]), kb, kb + 6)
        if j < 15:
            gaps[kb + 14].append('v_cmp_lt_f32 vcc, s%d, v%d' % (sTHR, T[5]))
            gaps[kb + 15].insert(0, ('rare', j + 1))
            vccbusy.add(kb + 14)
    def vok(k): return k + 1 if k in vccbusy else k
    k5 = idx[('qk', 3)]
    its = ['v_mov_b32 v%d, 0' % VPOLL, 'buffer_load_dword v%d, v%d, s[%d:%d], 0 offen sc1' % (VNON, VPOLL, SDBG, SDBG + 3),
           'v_lshrrev_b32 v%d, 4, v%d' % (T[6], VL16),
           'v_cmp_gt_u32 vcc, %d, v%d' % (OPT.get('fw', 32), T[6]),
           'v_mov_b32 v%d, 0x%x' % (T[7], OOB),
           'v_lshlrev_b32 v%d, 2, v%d' % (T[8], T[6]),
           'v_and_b32 v%d, 15, v%d' % (VFL, T[6]),
           'v_cndmask_b32 v%d, v%d, v%d, vcc' % (VFO, T[7], T[8]),
           'v_mul_u32_u24 v%d, %d, v%d' % (VFL, FST, VFL),
           'v_and_b32 v%d, 31, v%d' % (T[7], T[6]), 'v_mul_u32_u24 v%d, 896, v%d' % (T[7], T[7]),
           'v_and_b32 v%d, 32, v%d' % (T[8], T[6]), 'v_add_u32 v%d, v%d, v%d' % (VXO, T[7], T[8])]
    spread(gaps, its, k5, k5 + 12)
    kp = vok(kk - OPT['ypace'] + OPT['ypd'])
    assert kp > k5 + 40
    gaps[kp] += [('nonce',), ('waittag', 'y'), 'buffer_store_dword v%d, v%d, s[%d:%d], s%d offen sc1' % (VNON, VFO, SWS, SWS + 3, sFP)]
    gaps[kp + OPT['yfl']] += ['buffer_load_dword v%d, v%d, s[%d:%d], s%d offen sc1' % (VPOLL, VFL, SWS, SWS + 3, sFC)]
    kq = vok(kp + OPT['yfl'] + OPT['ychk'])
    sys.stderr.write('ypub at iter %.1f, ychk at iter %.1f\n' % ((kp - kq0 - 16) / 32, (kq - kq0 - 16) / 32))
    gaps[kq] += [('poll', 'h', 0)]
    def pl(dst, so, off): return 'buffer_load_dwordx4 %s, v%d, s[%d:%d], s%d offen offset:%d sc1' % (ar(dst, 4), VL16, SWS, SWS + 3, so, off)
    lo, hi = kq + 1, o0 + OPT['yend']
    for i in range(32):
        gaps[lo + i * (hi - lo) // 32] += [pl(yq(i), sYB, (i & 1) * 1024)] + (['s_add_u32 s%d, s%d, %d' % (sYB, sYB, HS)] if i & 1 else [])
    g0 = idx[('pv', 15)] + 10
    its = [x for t in range(16) for x in conv_items(OF, t, T[0:4])]
    quota(gaps, its[:48], g0, 8)
    quota(gaps, its[48:], g0 + 6, 6)
    gaps[o0 + 26] += ['v_mov_b32 v%d, v%d' % (T[4], VL), 'v_mov_b32 v%d, v%d' % (T[5], VL)]
    gaps[o0 + 27] += ['v_permlane32_swap_b32 v%d, v%d' % (T[4], T[5])]
    gaps[o0 + 28] += ['v_add_f32 v%d, v%d, v%d' % (T[4], T[4], T[5])]
    gaps[o0 + 29] += ['v_rcp_f32 v%d, v%d' % (VRI, T[4])]
    its = ['s_lshr_b32 s%d, s%d, 1' % (sT1, sCT), 's_add_u32 s%d, s%d, 21' % (sT1, sT1),
           'v_bfe_u32 v%d, v%d, 4, 4' % (T[8], VL16),
           'v_sub_u32 v%d, s%d, v%d' % (VSTEP, sT1, T[8]),
           'v_mul_u32_u24 v%d, 37, v%d' % (VNEED, VSTEP),
           'v_lshrrev_b32 v%d, 8, v%d' % (VNEED, VNEED),
           'v_mul_u32_u24 v%d, 7, v%d' % (VNEED, VNEED),
           'v_sub_u32 v%d, v%d, v%d' % (VSTEP, VSTEP, VNEED),
           'v_add3_u32 v%d, v%d, v%d, 1' % (VNEED, VSTEP, VNON),
           's_add_u32 s%d, s%d, 128' % (sFC, sFC), 's_add_u32 s%d, s%d, 128' % (sFP, sFP)]
    spread(gaps, its, o0 + 48, o0 + 60)
    its = ['v_lshrrev_b32 v%d, 4, v%d' % (T[6], VL16),
           'v_lshrrev_b32 v%d, 3, v%d' % (T[7], T[6]),
           'v_xor_b32 v%d, v%d, v%d' % (T[7], T[7], T[6]),
           'v_and_b32 v%d, 4, v%d' % (T[7], T[7]),
           'v_lshlrev_b32 v%d, 1, v%d' % (T[7], T[7]),
           'v_bfe_u32 v%d, v%d, 3, 2' % (T[8], T[6]),
           'v_lshl_or_b32 v%d, v%d, 1, v%d' % (T[7], T[8], T[7]),
           'v_bfe_u32 v%d, v%d, 1, 1' % (T[8], T[6]),
           'v_or_b32 v%d, v%d, v%d' % (T[7], T[7], T[8]),
           'v_and_b32 v%d, 1, v%d' % (T[8], T[6]),
           'v_lshlrev_b32 v%d, 4, v%d' % (T[8], T[8]),
           'v_mov_b32 v%d, 0x3f80' % T[6],
           'v_lshlrev_b32 v%d, v%d, v%d' % (T[8], T[8], T[6])]
    for d in range(8):
        its += [('seq', ['v_cmp_eq_u32 vcc, %d, v%d' % (d, T[7]), 'v_cndmask_b32 v%d, 0, v%d, vcc' % (IA[0] + d, T[8])])]
    spread(gaps, its, o0 + 80, o0 + 94)
    def epi_items(u):
        its = []
        for n in range(2):
            acc = SACC[u & 1] + 16 * n
            for q in range(2):
                for d in range(4):
                    i = acc + 8 * q + 2 * d
                    its += ['v_mul_f32 v%d, v%d, v%d' % (i, i, VRI), 'v_mul_f32 v%d, v%d, v%d' % (i + 1, i + 1, VRI),
                            'v_cvt_pk_bf16_f32 v%d, v%d, v%d' % (ST + 8 * n + 4 * q + d, i, i + 1)]
                its.append(('tag', ('s', u), 'buffer_store_dwordx4 %s, v%d, s[%d:%d], s%d offen offset:%d%s' % (vr(ST + 8 * n + 4 * q, 4), VL16, SWS, SWS + 3, sSP, n * 2048 + q * 1024, STF)))
        if u < 6:
            its += [('seq', ['s_add_u32 s%d, s%d, 4096' % (sSP, sSP), 's_cmp_eq_u32 s%d, s%d' % (sSP, sSPE),
                    's_cselect_b32 s%d, 28672, 0' % sT0, 's_sub_u32 s%d, s%d, s%d' % (sSP, sSP, sT0)])]
        return its
    gaps[kt - 1].append(('noty',))
    spub = 'buffer_store_dword v%d, v%d, s[%d:%d], s%d offen sc1' % (VNON, VFO, SWS, SWS + 3, sFP)
    def sfl(u): return 'buffer_load_dword v%d, v%d, s[%d:%d], s%d offen sc1' % (VP2[u & 1], VFL, SWS, SWS + 3, sFC)
    LS = {k: [o0 + int(x) for x in str(OPT[k]).split(',')] for k in ('pub', 'fl', 'chk')}
    npub_pre = 0
    for u in range(7):
        k0 = o0 + 32 * (u + 1)
        spread(gaps, epi_items(u), k0 + (1 if u < 6 else 0), k0 + (OPT['epw'] if u < 6 else 6))
        if LS['pub'][u] < kt: npub_pre += 1
        gaps[LS['pub'][u]] += ['v_add_u32 v%d, 1, v%d' % (VNON, VNON), ('waittag', ('s', u)), spub]
    def rdy(vp): return ['v_sub_u32 v%d, v%d, v%d' % (vp, vp, VNEED), 'v_cmp_ge_u32 vcc, 7, v%d' % vp, 's_and_b32 s%d, vcc_lo, s%d' % (sRDY, sPEND)]
    def take(r0, r1):
        return ['s_ff1_i32_b32 s%d, s%d' % (sHA, sRDY), 's_bitset0_b32 s%d, s%d' % (sRDY, sHA), 's_bitset0_b32 s%d, s%d' % (sPEND, sHA),
                's_min_u32 s%d, s%d, 255' % (sHA, sHA), 's_mul_i32 s%d, s%d, %d' % (sHA, sHA, HS), 's_add_u32 s%d, s%d, s%d' % (sHA, sHA, sPB)] + \
               ['buffer_load_dwordx4 %s, v%d, s[%d:%d], s%d offen offset:%d sc1' % (r, VL16, SWS, SWS + 3, sHA, o) for r, o in ((r0, 0), (r1, 1024))]
    nfl = 0
    for gi in range(4):
        kl = LS['chk'][gi]
        if LS['fl'][gi] > o0:
            nfl += 1
            gaps[LS['fl'][gi]] += [sfl(nfl)]
            gaps[kl] += rdy(VP2[nfl & 1])
        for j in range(4):
            its = take(ar(32 * gi + 8 * j, 4), ar(32 * gi + 8 * j + 4, 4))
            if kl < kt:
                th = OPT['thin']
                gaps[kl + 1 + 2 * th * j] += its[:6]; gaps[kl + 2 + 2 * th * j] += its[6:7]; gaps[kl + 2 + th + 2 * th * j] += its[7:]
            else:
                assert kl + j < kt + 32 + 8 * gi + 2 * j
                gaps[kl + j] += its
    gaps[o0 + OPT['flt']] += [sfl(0)]
    ks_ = LS['chk'][-1]
    gaps[o0 + 110] += ['buffer_load_dwordx4 %s, v%d, s[%d:%d], s%d offen' % (vr(XF[0], 4), VXO, SX, SX + 3, sXO),
                       'buffer_load_dwordx4 %s, v%d, s[%d:%d], s%d offen offset:16' % (vr(XF[1], 4), VXO, SX, SX + 3, sXO)]
    Y = YACC; E = 112; XX = 0
    its = ['s_mov_b32 s%d, %s' % (sT3, f2h(KINV)), 's_mov_b32 s%d, %s' % (sT4, f2h(-KINV * math.log2(math.e)))]
    for d in range(8):
        its += ['v_lshlrev_b32 v%d, 16, v%d' % (XX + 2 * d, XF[d >> 2] + (d & 3)), 'v_and_b32 v%d, s%d, v%d' % (XX + 2 * d + 1, sMASK, XF[d >> 2] + (d & 3))]
    spread(gaps, its, kt + 12, kt + 20)
    its = ['v_mul_f32 v%d, s%d, v%d' % (E + i, sT4, Y + i) for i in range(16)]
    its += ['v_exp_f32 v%d, v%d' % (E + i, E + i) for i in range(16)]
    for i in range(16): its += ['v_mul_f32 v%d, s%d, v%d' % (Y + i, sT3, Y + i), 'v_add_f32 v%d, 1.0, v%d' % (E + i, E + i)]
    its += ['v_rcp_f32 v%d, v%d' % (E + i, E + i) for i in range(16)]
    its += ['v_mul_f32 v%d, v%d, v%d' % (Y + i, Y + i, E + i) for i in range(16)]
    spread(gaps, its, kt + 33, kt + 46)

    def emit_reads(k):
        s, rd, fn = M[k]
        assert s in certified, (k, s)
        af = AF[k % PF]
        for mn, w, base, off in rd:
            width = 4 if mn.endswith('b128') else 2
            g('%s %s, v%d offset:%d' % (mn, vr(af + w, width), base, off))
    certified = {0}
    dmaq = [x for s_ in range(OPT['ndp'], 4) for x in dma_items(s_)]
    for k in range(PF): emit_reads(k)
    for s in norm_items(0): g(s)
    since = 0
    stamp_at = {idx[('p1', 14)], kyp, idx[('qk', 0)], idx[('qk', 4)], idx[('qk', 8)], o0, kt}
    if OPT.get('stk'): stamp_at = {o0 + int(x) for x in OPT['stk'].split(',')}
    if OPT.get('stp'): stamp_at = {int(x) for x in OPT['stp'].split(',')}
    stamp4 = {0, idx[('qk', 0)], o0, kt}
    rare_sites = []
    oolines = []
    def spin(name, back, vp, vn, load):
        o = oolines
        o.append('%s:' % name)
        if vn:
            o.append('    s_cmp_lt_u32 s%d, 4' % sI)
            o.append('    s_cbranch_scc1 %s' % back)
        o.append('    s_mov_b32 s%d, 0' % sSPIN)
        o.append('%s_l:' % name)
        o.append('    s_sleep 2')
        o.append('    ' + load)
        o.append('    s_add_u32 s%d, s%d, 1' % (sSPIN, sSPIN))
        o.append('    s_cmp_gt_u32 s%d, %d' % (sSPIN, SPIN_MAX))
        o.append('    s_cbranch_scc1 %s' % back)
        o.append('    s_waitcnt vmcnt(0)')
        for x in (vp if isinstance(vp, list) else [vp]):
            o.append('    ' + x)
            o.append('    s_nop 1')
        o.append('    s_cbranch_vccnz %s_l' % name)
        o.append('    s_branch %s' % back)
    for k in range(NM):
        s, rd, fn = M[k]
        if k in stamp_at: st(1)
        if k in stamp4: st(4); st(4, real=True)
        if k % 2 == 0 and k + 1 < NM:
            a = AF[(k + 1) % PF]
            g.wait_regs(['v%d' % (a + 3), 'v%d' % (a + 1)])
        g(fn(AF[k % PF]))
        if k in bar_at:
            sb = bar_at[k]
            assert len(dmaq) <= 16
            g.wait_tag(('st', sb + 1), False)
            if not (OPT.get('xbar') and sb >= 2): g('s_barrier')
            certified.add(sb + 1)
            if sb + 4 < NST and not (OPT.get('xdma') and sb >= 1): dmaq += dma_items(sb + 4)
            since = OPT['dmaper']
        dma = None
        since += 1
        if dmaq and (since >= (OPT['dmaper'] if k < o0 else OPT['dmo']) or len(dmaq) > 8):
            dma = dmaq.pop(0); since = 0
            if dma[0]: dma[0]()
        if k + PF < NM: emit_reads(k + PF)
        if dma: dma[1]()
        for it in gaps[k]:
            if isinstance(it, str):
                if OPT.get('xvalu') and it.startswith('v_') and (k < k27 - 15 or idx[('qk', 4)] <= k < idx[('pv', 14)]) and 'v_cmp' not in it and ('v%d,' % TA_) not in it and ('v%d,' % TB_) not in it: continue
                g(it); continue
            if it[0] == 'rare':
                j = it[1]
                g('s_cbranch_vccnz L1_tr%d' % j)
                g.label('L1_bk%d' % j)
                rare_sites.append(j)
            elif it[0] == 'tag': g(it[2], tag=it[1])
            elif it[0] == 'label': g.label(it[1])
            elif it[0] == 'raw':
                g('s_nop 0'); g.raw('    ' + it[1]); g.pos += 1; g.vm.append((None, {'v%d' % TD_}, False))
            elif it[0] == 'waittag': g.wait_tag(it[1], False)
            elif it[0] == 'nonce':
                c = 'v_cmp_eq_u32 vcc, 0, v%d' % VNON
                g(c); g('s_nop 1'); g('s_cbranch_vccnz L1_spn'); g.label('L1_spn_b')
                spin('L1_spn', 'L1_spn_b', c, None, 'buffer_load_dword v%d, v%d, s[%d:%d], 0 offen sc1' % (VNON, VPOLL, SDBG, SDBG + 3))
            elif it[0] == 'poll':
                vp, vn = VPOLL, VNON
                c = 'v_cmp_ne_u32 vcc, v%d, v%d' % (vp, vn)
                nm = 'L1_sp' + it[1]
                g(c); g('s_nop 1'); g('s_cbranch_vccnz ' + nm); g.label(nm + '_b')
                spin(nm, nm + '_b', c, True, 'buffer_load_dword v%d, v%d, s[%d:%d], s%d offen sc1' % (vp, VFL, SWS, SWS + 3, sFC))
            elif it[0] == 'call': it[1]()
            elif it[0] == 'seq':
                for x in it[1]: (g(x) if isinstance(x, str) else g(x[1], tag=x[0]))
            elif it[0] == 'noty':
                g('s_cmp_lt_u32 s%d, 4' % sI)
                g('s_cbranch_scc1 L1_noty')
                nst_noty = st.n
    st(1)
    for x in rdy(VP2[0]): g(x)
    g('s_mov_b32 s%d, 0' % sSPIN)
    R = g.raw
    for r in range(16):
        R('    s_cmp_eq_u32 s%d, 0' % sPEND)
        R('    s_cbranch_scc1 L1_sum%d' % r)
        R('L1_r%d:' % r)
        R('    s_cmp_lg_u32 s%d, 0' % sRDY)
        R('    s_cbranch_scc1 L1_g%d' % r)
        if OPT['slp']: R('    s_sleep %d' % OPT['slp'])
        if OPT['pmask']:
            R('    s_mov_b32 exec_lo, s%d' % sPEND)
            R('    s_mov_b32 exec_hi, 0')
        R('    ' + sfl(0))
        if OPT['pmask']: R('    s_mov_b64 exec, -1')
        R('    s_add_u32 s%d, s%d, 1' % (sSPIN, sSPIN))
        R('    s_cmp_gt_u32 s%d, %d' % (sSPIN, SPIN_MAX))
        R('    s_cbranch_scc1 L1_sum%d' % r)
        R('    s_waitcnt vmcnt(0)')
        for x in rdy(VP2[0]): R('    ' + x); R('    s_nop 1')
        R('    s_branch L1_r%d' % r)
        R('L1_g%d:' % r)
        for x in take(vr(128 + 8 * r, 4), vr(132 + 8 * r, 4)): R('    ' + x)
    for r in range(16, -1, -1):
        R('L1_sum%d:' % r)
        if r:
            R('    s_waitcnt vmcnt(0)')
            for q in range(2): R('    ' + MF(vr(SA, 16), vr(IA[q], 4), vr(128 + 8 * (r - 1) + 4 * q, 4), vr(SA, 16)))
    g.vm = []; g.fence()
    g('s_nop 15')
    for i in range(16): g('v_fma_f32 v%d, v%d, v%d, v%d' % (XX + i, Y + i, SA + i, XX + i))
    for d in range(8): g('v_cvt_pk_bf16_f32 v%d, v%d, v%d' % (E + d, XX + 2 * d, XX + 2 * d + 1))
    g('buffer_store_dwordx4 %s, v%d, s[%d:%d], s%d offen' % (vr(E, 4), VXO, SOUT, SOUT + 3, sXO))
    g('buffer_store_dwordx4 %s, v%d, s[%d:%d], s%d offen offset:16' % (vr(E + 4, 4), VXO, SOUT, SOUT + 3, sXO))
    st(5); st(real=True)
    st.dump(g, SWS, 2, STAMP_BASE, T[0])
    g.label('L1_end')
    g('s_endpgm')
    r = Gen()
    r.label('L1_noty')
    r('s_nop 15')
    for it in epi_items(6): r(it if isinstance(it, str) else it[2])
    r('v_add_u32 v%d, %d, v%d' % (VNON, 7 - npub_pre, VNON))
    r.waitall()
    r(spub)
    if OPT['stamp']:
        for i in range(nst_noty, st.n): r('s_memrealtime s[%d:%d]' % (sSTAMP + 2 * i, sSTAMP + 2 * i + 1))
        st.dump(r, SWS, 2, STAMP_BASE, T[0])
    r('s_endpgm')
    g.out += r.out + oolines
    for j in rare_sites:
        g.label('L1_tr%d' % j)
        g.raw('    s_mov_b32 s%d, %d' % (sIDX, j))
        g.raw('    s_branch L1_rare%d' % (j & 1))
    for par in range(2):
        r = Gen()
        S = SB[par]
        r.label('L1_rare%d' % par)
        r('s_nop 15')
        r('v_mov_b32 v%d, v%d' % (T[4], T[5]))
        r('v_permlane32_swap_b32 v%d, v%d' % (T[5], T[4]))
        r('v_max3_f32 v%d, v%d, v%d, 0' % (T[5], T[5], T[4]))
        r('v_exp_f32 v%d, -v%d' % (T[4], T[5]))
        for i in range(16):
            r('v_sub_f32 v%d, v%d, v%d' % (S + i, S + i, T[5]))
            r('v_sub_f32 v%d, v%d, v%d' % (NEGM + i, NEGM + i, T[5]))
        r('v_mul_f32 v%d, v%d, v%d' % (VL, VL, T[4]))
        for i in range(128):
            tt = T[i & 1]
            r('v_accvgpr_read_b32 v%d, a%d' % (tt, i))
            r('v_mul_f32 v%d, v%d, v%d' % (tt, tt, T[4]))
            r('v_accvgpr_write_b32 a%d, v%d' % (i, tt))
        r('s_nop 3')
        js = [j for j in rare_sites if (j & 1) == par]
        for j in js[:-1]:
            r('s_cmp_eq_u32 s%d, %d' % (sIDX, j))
            r('s_cbranch_scc1 L1_bk%d' % j)
        if par: r.label('L1_last')
        r('s_branch L1_bk%d' % js[-1])
        g.out += r.out
    sys.stderr.write('K1: %d mfma, nops %d, counts %s\n' % (NM, g.nnop, g.count))
    return g.out

def main():
    out = []
    hdr = open('cdna_kernels/%s.s.ref' % NAME).read().split('\n')
    for l in hdr:
        if l.startswith('; @launch'): break
        out.append(l)
    nm = NAME + '_kernel'
    out.append('; @launch grid=(256,1,1) block=(256,1,1) lds=163840')
    out.append('.amdgcn_target "amdgcn-amd-amdhsa--gfx950"')
    out.append('.text')
    out += ['.globl %s' % nm, '.p2align 8', '.type %s,@function' % nm]
    out += gen_k1()
    out.append('.section .rodata,"a"')
    out += ['.p2align 6', '.amdhsa_kernel %s' % nm, '  .amdhsa_next_free_vgpr 512', '  .amdhsa_next_free_sgpr 102',
            '  .amdhsa_accum_offset 256', '  .amdhsa_group_segment_fixed_size 0', '  .amdhsa_kernarg_size 96',
            '  .amdhsa_user_sgpr_count 2', '  .amdhsa_user_sgpr_kernarg_segment_ptr 1',
            '  .amdhsa_system_sgpr_workgroup_id_x 1', '.end_amdhsa_kernel']
    open(sys.argv[1], 'w').write('\n'.join(out) + '\n')
main()
```

```python
import sys, struct, math
from asmlib import *

def f2h(x): return '0x%08x' % struct.unpack('<I', struct.pack('<f', x))[0]

NAME = 'recurrent_scan__sliding_block_cached__glu_gated_bilinear__prompt'
OPT = dict(oobk=7, stamp=0, tcode=1, grp='x0123456', pf=6, dmaper=3, barpos=8, hx=2, wsoff=0, tw1=1, tw0=5, xa=4, tx=0, slp=0, pmask=1, thin=3, ndp=4, twd=6, tkv=16, two=9, epw=12, dmo=1, vq=6,
           direct='0,1,2,5,8,11', ypace=11, ypd=40, yfl=20, ychk=90, yend=0,
           pub='110,142,174,206,222,232,233', fl='231,0,0,0', chk='234,238,242,246', flt=250, fst=256)
for a in sys.argv[2:]:
    k, v = a.split('=')
    OPT[k] = int(v) if v.lstrip('-').isdigit() else v
STF = {0: ' sc1', 1: '', 2: ' sc0 sc1', 3: ' sc1 nt', 4: ' nt'}[OPT.get('stf', 0)]

DFL = {0: '', 1: ' nt', 2: ' sc1', 3: ' sc0', 4: ' sc0 sc1'}[OPT.get('dfl', 0)]
CS = math.log2(math.e) / 16.0
KINV = 1.0 / (CS * CS)
SP_BASE = OPT['wsoff'] << 20
YP_OFF = 0x1C00000
FL_BASE = SP_BASE + 0x3800000
STAMP_BASE = 0x3E00000
FST = OPT.get('fst', 4352)
WS_SIZE = 268435456
OOB = 0x40000000
TTHR = 24.0
SPIN_MAX = 1 << 17

PF = OPT['pf']
AF = [4 * i for i in range(PF)]
DV1 = list(range(28, 36)); DV2 = list(range(36, 44)); DV3 = list(range(44, 52))
VB = [[52 + 4 * s + i for i in range(4)] for s in range(3)]
VG = [64, 65, 66]
OB = [[67 + 2 * s + i for i in range(2)] for s in range(3)]
KB = [[73 + 8 * s + i for i in range(8)] for s in range(3)]
VL16 = 97; VL = 98; VA = 99; VBB = 100; VMX = 101; VRI = 102
VFO = 99; VFL = 100
T = list(range(103, 112))
NEGM = 112; ST = 112
X = 128; Q = 128; SB = [192, 208]; PB = [224, 228]
VNON = 28; VPOLL = 29; VP2 = [30, 31]; VNEED = 32; VSTEP = 33; VXO = 101
OF = 128; SACC = [192, 224]
HF = [24, 28, 32, 112, 116, 120, 124]; YB = [192, 208, 224, 240]
YACC = 76; SA = 36; XF = [60, 92]; IA = [52, 56]
HS = 64 * 28672
SX, S1, SKV, SWO, SWD, SWS, SDBG, SOUT = 28, 32, 36, 40, 44, 48, 4, 8
sW, sH, sRT, sKVH, sO1, sST1, sOKV, sOWO, sQB = 52, 53, 54, 55, 56, 57, 58, 59, 60
sT0, sT1, sT2, sONE, sMASK, sTHR, sIDX, sSP, sYP, sAD3, sT3, sT4 = 61, 62, 63, 64, 65, 66, 67, 68, 69, 70, 71, 72
sI, sCT, sRO, sOWD, sFP, sFC, sYB, sPB, sXO, sNON, sSPIN = 12, 13, 14, 15, 16, 17, 18, 19, 20, 21, 22
sWOE, sSPE, sPEND = 23, 24, 25
sRDY, sHA = 26, 27
sTC, sTS, sTI, sRL = 73, 100, 101, 3
sSTAMP = 76
CL = 5
NST = 42

def slot_off(stage):
    s = stage % 5
    return s // 2, (s % 2) * 32768

def srd(g, d, p, size):
    g('s_mov_b32 s%d, s%d' % (d, p))
    g('s_and_b32 s%d, s%d, 0xffff' % (d + 1, p + 1))
    g('s_mov_b32 s%d, 0x%x' % (d + 2, size))
    g('s_mov_b32 s%d, 0x20000' % (d + 3))

class Stamper:
    def __init__(self, g): self.g = g; self.n = 0
    def __call__(self, lvl=3, real=False):
        if real and lvl == 3: lvl = 7
        if (OPT['stamp'] & lvl) and self.n < 12:
            self.g('%s s[%d:%d]' % ('s_memrealtime' if (real or OPT.get('real')) else 's_memtime', sSTAMP + 2 * self.n, sSTAMP + 2 * self.n + 1))
            self.n += 1
    def dump(self, g, srdn, wgs, base, vt):
        if not OPT['stamp']: return
        g.waitall()
        g('s_lshl_b32 s%d, s%d, 2' % (sT0, wgs))
        g('s_add_u32 s%d, s%d, s%d' % (sT0, sT0, sW))
        g('s_lshl_b32 s%d, s%d, 6' % (sT0, sT0))
        g('s_add_u32 s%d, s%d, 0x%x' % (sT0, sT0, base))
        g('v_mov_b32 v%d, 0' % (vt + 1))
        for i in range(self.n):
            g('v_mov_b32 v%d, s%d' % (vt, sSTAMP + 2 * i))
            g('buffer_store_dword v%d, v%d, s[%d:%d], s%d offen offset:%d' % (vt, vt + 1, srdn, srdn + 3, sT0, 4 * i))
            g('s_nop 1')

def spread(gaps, items, lo, hi):
    n = hi - lo + 1
    m = len(items)
    for i, it in enumerate(items):
        gaps[lo + (i * n) // m].append(it)

def quota(gaps, items, lo, q):
    for i, it in enumerate(items):
        gaps[lo + i // q].append(it)

def MF(d, a, b, c): return 'v_mfma_f32_32x32x16_bf16 %s, %s, %s, %s' % (d, a, b, c)

def gen_k1():
    g = Gen(); st = Stamper(g)
    KN = NAME + '_kernel'
    g.label(KN)
    g('s_cmp_ge_u32 s2, 256')
    g('s_cbranch_scc1 L1_end')
    st(7); st(real=True)
    g('s_load_dwordx16 s[4:19], s[0:1], 0')
    g('s_load_dwordx8 s[20:27], s[0:1], 64')
    if OPT['tcode'] == 2:
        g('s_getpc_b64 s[74:75]')
        g.label('L1_pc')
        g('s_lshr_b32 s%d, s2, 3' % sT1)
        g('s_mul_i32 s%d, s%d, %d' % (sT2, sT1, 4 * CL * 128))
        g('v_min_u32 v253, %d, v0' % (4 * CL - 1))
        g('v_lshlrev_b32 v253, 7, v253')
        g('v_add_u32 v253, s%d, v253' % sT2)
        g('v_min_u32 v253, L1_last-L1_pc, v253')
        g('v_mov_b32 v25, s75')
        g('v_add_co_u32 v24, vcc, s74, v253')
        g('v_addc_co_u32 v25, vcc, 0, v25, vcc')
        g('global_load_dword v27, v[24:25], off')
    L, N, HH, R_, C_, GP, SW = 240, 241, 242, 243, 244, 245, 249
    t0, t1, t2, t3, t4 = 250, 251, 252, 253, 254
    XV = T[0:4]
    g('v_lshrrev_b32 v%d, 6, v0' % t0)
    g('v_and_b32 v%d, 63, v0' % L)
    g('v_readfirstlane_b32 s%d, v%d' % (sW, t0))
    HX = OPT['hx']; lhx = HX.bit_length() - 1
    ng = 16 // HX
    g('s_and_b32 s%d, s2, 7' % sT0)
    g('s_lshr_b32 s%d, s2, 3' % sT1)
    g('s_and_b32 s%d, s%d, %d' % (sT2, sT0, ng - 1))
    g('s_lshl_b32 s%d, s%d, %d' % (sH, sT2, lhx))
    g('s_and_b32 s%d, s%d, %d' % (sT2, sT1, HX - 1))
    g('s_add_u32 s%d, s%d, s%d' % (sH, sH, sT2))
    g('s_lshr_b32 s%d, s%d, %d' % (sT2, sT0, 4 - lhx))
    g('s_lshl_b32 s%d, s%d, %d' % (sRT, sT2, 5 - lhx))
    g('s_lshr_b32 s%d, s%d, %d' % (sT2, sT1, lhx))
    g('s_add_u32 s%d, s%d, s%d' % (sRT, sRT, sT2))
    g('s_lshr_b32 s%d, s%d, 1' % (sKVH, sH))
    g('s_lshl_b32 s%d, s%d, 13' % (sQB, sW))
    g('s_lshl_b32 s%d, s%d, 2' % (sT3, sRT))
    g('s_add_u32 s%d, s%d, s%d' % (sT3, sT3, sW))
    g('s_mul_i32 s%d, s%d, %d' % (sT4, sT3, 32 * 896))
    g('v_lshrrev_b32 v%d, 3, v%d' % (t0, L))
    g('v_and_b32 v%d, 7, v%d' % (t1, L))
    g('v_lshrrev_b32 v%d, 4, v%d' % (t2, L))
    g('v_xor_b32 v%d, v%d, v%d' % (t1, t1, t2))
    g('v_mul_u32_u24 v%d, 896, v%d' % (t0, t0))
    g('v_lshl_add_u32 v%d, v%d, 4, v%d' % (XV[0], t1, t0))
    g('v_xor_b32 v%d, 64, v%d' % (t1, XV[0]))
    g('v_add_u32 v%d, %d, v%d' % (XV[2], 2 * (7168 - 1024), XV[0]))
    g('v_add_u32 v%d, %d, v%d' % (XV[1], 7168 - 1024, t1))
    g('v_add_u32 v%d, %d, v%d' % (XV[3], 3 * (7168 - 1024), t1))
    if OPT['tcode'] == 1:
        g('s_getpc_b64 s[74:75]')
        g.label('L1_pc')
        g('s_lshl_b32 s%d, s%d, 2' % (sT2, sT1))
        g('s_add_u32 s%d, s%d, s%d' % (sT2, sT2, sW))
        g('s_mul_i32 s%d, s%d, %d' % (sT2, sT2, CL * 128))
        g('v_min_u32 v%d, %d, v%d' % (t3, CL - 1, L))
        g('v_lshlrev_b32 v%d, 7, v%d' % (t3, t3))
        g('v_add_u32 v%d, s%d, v%d' % (t3, sT2, t3))
        g('v_min_u32 v%d, L1_last-L1_pc, v%d' % (t3, t3))
        g('v_mov_b32 v25, s75')
        g('v_add_co_u32 v24, vcc, s74, v%d' % t3)
        g('v_addc_co_u32 v25, vcc, 0, v25, vcc')
        g('global_load_dword v27, v[24:25], off')
    st(2)
    g('s_waitcnt lgkmcnt(0)')
    st(2)
    srd(g, SX, 4, 2048 * 896)
    if OPT['tx']:
        g('v_lshrrev_b32 v%d, 1, v%d' % (t0, L))
        g('v_mul_u32_u24 v%d, 896, v%d' % (t0, t0))
        g('v_and_b32 v%d, 1, v%d' % (t1, L))
        g('v_lshl_add_u32 v%d, v%d, 7, v%d' % (t0, t1, t0))
        for i in range(OPT['tx']):
            g('s_nop 0'); g.raw('    buffer_load_dword v26, v%d, s[%d:%d], s%d offen offset:%d' % (t0, SX, SX + 3, sT4, 640 - 256 * i)); g.pos += 1; g.vm.append((None, {'v26'}, False))
    g('s_cmp_eq_u32 s%d, 2' % sW)
    g('s_cselect_b32 s%d, s16, s18' % S1)
    g('s_cselect_b32 s%d, s17, s19' % (S1 + 1))
    g('s_and_b32 s%d, s%d, 1' % (sT0, sH))
    g('s_mul_i32 s%d, s%d, 448' % (sTC, sKVH))
    g('s_and_b32 s%d, s%d, 0xffffff80' % (sTC, sTC))
    g('s_lshl_b32 s%d, s%d, 9' % (sT1, sH))
    g('s_mov_b32 s%d, 0x%x' % (S1 + 2, 448 * 3584))
    g('s_mov_b32 s%d, 3584' % sTS)
    g('s_cmp_lt_u32 s%d, 2' % sW)
    g('s_cselect_b32 s%d, s10, s%d' % (S1, S1))
    g('s_cselect_b32 s%d, s11, s%d' % (S1 + 1, S1 + 1))
    g('s_cselect_b32 s%d, 0x%x, s%d' % (S1 + 2, 448 * 8192, S1 + 2))
    g('s_cselect_b32 s%d, 8192, s%d' % (sTS, sTS))
    g('s_cselect_b32 s%d, s%d, s%d' % (sTC, sT1, sTC))
    g('s_cselect_b32 s%d, s%d, s%d' % (sT0, sW, sT0))
    g('s_and_b32 s%d, s%d, 0xffff' % (S1 + 1, S1 + 1))
    g('s_mov_b32 s%d, 0x20000' % (S1 + 3))
    F = HX // 2
    g('s_and_b32 s%d, s%d, %d' % (sRL, sRT, 16 // F - 1))
    g('s_lshl_b32 s%d, s%d, 1' % (sTI, sRL))
    g('s_add_u32 s%d, s%d, s%d' % (sTI, sTI, sT0))
    def wtouch(row0, nrow):
        nrow *= F
        if nrow > 16:
            a_ = nrow // F // 2
            wtouch(row0, a_); wtouch(row0 + 32 * a_, nrow // F - a_)
            return
        g('s_mul_i32 s%d, s%d, %d' % (sT0, sTI, nrow))
        g('s_add_u32 s%d, s%d, %d' % (sT0, sT0, row0))
        g('v_min_u32 v%d, %d, v%d' % (t0, 4 * nrow - 1, L))
        g('v_lshrrev_b32 v%d, 2, v%d' % (t1, t0))
        g('v_add_u32 v%d, s%d, v%d' % (t1, sT0, t1))
        g('v_mul_u32_u24 v%d, s%d, v%d' % (t1, sTS, t1))
        g('v_and_b32 v%d, 3, v%d' % (t0, t0))
        g('v_lshl_add_u32 v%d, v%d, 7, v%d' % (t0, t0, t1))
        g('s_nop 0'); g.raw('    buffer_load_dword v26, v%d, s[%d:%d], s%d offen' % (t0, S1, S1 + 3, sTC)); g.pos += 1; g.vm.append((None, {'v26'}, False))
    if OPT['tw0']: wtouch(0, OPT['tw0'])
    pre = []
    P = pre.append
    P('v_and_b32 v%d, 31, v%d' % (N, L))
    P('v_lshrrev_b32 v%d, 5, v%d' % (HH, L))
    P('v_bfe_u32 v%d, v%d, 2, 2' % (R_, L))
    P('v_and_b32 v%d, 3, v%d' % (C_, L))
    P('v_bfe_u32 v%d, v%d, 4, 1' % (GP, L))
    P('v_lshrrev_b32 v%d, 1, v%d' % (t0, C_))
    P('v_and_b32 v%d, 1, v%d' % (t1, C_))
    P('v_lshl_or_b32 v%d, v%d, 1, v%d' % (SW, t1, t0))
    P('v_lshl_add_u32 v%d, v%d, 3, v%d' % (t2, HH, R_))
    P('v_lshlrev_b32 v%d, 9, v%d' % (t3, t2))
    P('v_lshl_add_u32 v%d, v%d, 5, v%d' % (t3, GP, t3))
    P('v_lshl_add_u32 v%d, v%d, 3, v%d' % (t3, SW, t3))
    for i in range(4):
        P('v_xor_b32 v%d, %d, v%d' % (t4, i, R_))
        P('v_lshl_add_u32 v%d, v%d, 6, v%d' % (VB[0][i], t4, t3))
        P('v_add_u32 v%d, 0x10000, v%d' % (VB[1][i], VB[0][i]))
        P('v_add_u32 v%d, 0x20000, v%d' % (VB[2][i], VB[0][i]))
    P('v_mul_u32_u24 v%d, 224, v%d' % (t3, t2))
    P('v_mul_u32_u24 v%d, 8320, v%d' % (t4, GP))
    P('v_add_u32 v%d, v%d, v%d' % (t3, t3, t4))
    P('v_lshl_add_u32 v%d, v%d, 3, v%d' % (VG[0], SW, t3))
    P('v_add_u32 v%d, 0x10000, v%d' % (VG[1], VG[0]))
    P('v_add_u32 v%d, 0x20000, v%d' % (VG[2], VG[0]))
    P('v_lshl_add_u32 v%d, v%d, 1, v%d' % (t0, GP, t0))
    P('v_lshl_add_u32 v%d, v%d, 2, v%d' % (t0, t1, t0))
    P('v_lshlrev_b32 v%d, 3, v%d' % (t0, t0))
    P('v_lshl_add_u32 v%d, v%d, 7, v%d' % (t0, t2, t0))
    P('v_lshrrev_b32 v%d, 1, v%d' % (t1, R_))
    for i in range(2):
        P('v_xor_b32 v%d, %d, v%d' % (t4, i, t1))
        P('v_lshl_add_u32 v%d, v%d, 6, v%d' % (OB[0][i], t4, t0))
        P('v_add_u32 v%d, 0x10000, v%d' % (OB[1][i], OB[0][i]))
        P('v_add_u32 v%d, 0x20000, v%d' % (OB[2][i], OB[0][i]))
    P('v_and_b32 v%d, 0x13, v%d' % (t0, N))
    P('v_bfe_u32 v%d, v%d, 2, 1' % (t1, N))
    P('v_lshl_or_b32 v%d, v%d, 3, v%d' % (t0, t1, t0))
    P('v_bfe_u32 v%d, v%d, 3, 1' % (t1, N))
    P('v_lshl_or_b32 v%d, v%d, 2, v%d' % (t0, t1, t0))
    P('v_and_b32 v%d, 15, v%d' % (t1, t0))
    P('v_xor_b32 v%d, v%d, v%d' % (t1, t1, HH))
    P('v_lshlrev_b32 v%d, 9, v%d' % (t0, t0))
    for i in range(8):
        P('v_xor_b32 v%d, %d, v%d' % (t4, 2 * i, t1))
        P('v_lshl_add_u32 v%d, v%d, 4, v%d' % (KB[0][i], t4, t0))
        P('v_add_u32 v%d, 0x10000, v%d' % (KB[1][i], KB[0][i]))
        P('v_add_u32 v%d, 0x20000, v%d' % (KB[2][i], KB[0][i]))
    P('v_lshlrev_b32 v%d, 4, v%d' % (VL16, L))
    P('v_mov_b32 v%d, 0' % VL)
    XR = [[NEGM + 4 * s + i for i in range(4)] for s in range(2)]
    P('v_bfe_u32 v%d, v%d, 1, 3' % (t0, N))
    P('v_xor_b32 v%d, v%d, v%d' % (t0, t0, HH))
    P('v_lshlrev_b32 v%d, 7, v%d' % (t1, N))
    P('v_add_u32 v%d, s%d, v%d' % (t1, sQB, t1))
    P('v_add_u32 v%d, 0x8000, v%d' % (t1, t1))
    for i in range(4):
        P('v_xor_b32 v%d, %d, v%d' % (t4, 2 * i, t0))
        P('v_lshl_add_u32 v%d, v%d, 4, v%d' % (XR[0][i], t4, t1))
        P('v_add_u32 v%d, 0x10000, v%d' % (XR[1][i], XR[0][i]))
    P('v_and_b32 v%d, 7, v%d' % (t0, L))
    P('v_lshlrev_b32 v%d, 2, v%d' % (t1, GP))
    P('v_xor_b32 v%d, v%d, v%d' % (t0, t0, t1))
    P('v_lshlrev_b32 v%d, 4, v%d' % (t0, t0))
    P('v_lshrrev_b32 v%d, 3, v%d' % (t1, L))
    P('v_mul_u32_u24 v%d, 896, v%d' % (t1, t1))
    P('v_add_u32 v%d, v%d, v%d' % (t0, t0, t1))
    P('s_mul_i32 s%d, s%d, %d' % (sOWO, sH, 256 * 896))
    P('s_mul_i32 s%d, s%d, %d' % (sT2, sW, 64 * 896))
    P('s_add_u32 s%d, s%d, s%d' % (sOWO, sOWO, sT2))
    for i in range(8):
        P('v_add_u32 v%d, %d, v%d' % (DV3[i], 8 * i * 896 - 1024 * (i & 3), t0))
    for i in range(4): P('v_mov_b32 v%d, 0' % T[4 + i])
    XA = OPT['xa']
    npre = (len(pre) + 4 * XA - 1) // (4 * XA)
    def xdma(cb):
        g('s_add_u32 m0, s%d, %d' % (sQB, (cb // 2 + 1) * 32768 + (cb & 1) * 4096))
        for gi in range(4):
            g('buffer_load_dwordx4 v%d, s[%d:%d], s%d offen offset:%d lds' % (XV[gi], SX, SX + 3, sT4, 1024 * gi), tag=('x', cb))
            for s in pre[:npre]: g(s)
            del pre[:npre]
        g('s_add_u32 s%d, s%d, 128' % (sT4, sT4))
    for cb in range(XA): xdma(cb)
    assert not pre
    st(2)
    g('s_cmp_lt_u32 s%d, 2' % sW)
    g('s_cbranch_scc0 L1_w23')
    g.fence()
    srd(g, SKV, 6, 8 * 2048 * 512)
    g('s_mov_b32 s%d, %d' % (sST1, 32 * 8192))
    g('s_lshl_b32 s%d, s%d, 20' % (sOKV, sKVH))
    if OPT['oobk'] & 1: g('s_add_u32 s%d, s%d, %d' % (SKV + 2, sOKV, 2048 * 512))
    g('s_add_u32 s%d, s%d, %d' % (sOKV, sOKV, 1536 * 512))
    g('s_lshl_b32 s%d, s%d, 9' % (sO1, sH))
    g('s_lshl_b32 s%d, s%d, 4' % (sT2, sW))
    g('v_add_u32 v%d, s%d, v%d' % (t0, sT2, HH))
    for par in range(2):
        g('v_add_u32 v%d, %d, v%d' % (t1, 2 * par, HH))
        g('v_lshlrev_b32 v%d, 2, v%d' % (t1, t1))
        g('v_xor_b32 v%d, v%d, v%d' % (t1, t1, N))
        g('v_lshlrev_b32 v%d, 4, v%d' % (t1, t1))
        g('v_lshl_add_u32 v%d, v%d, 13, v%d' % (t1, t0, t1))
        for i in range(par, 8, 2):
            g('v_add_u32 v%d, %d, v%d' % (DV1[i], 2 * i * 8192 - 1024 * (i & 3), t1))
    g('v_xor_b32 v%d, v%d, v%d' % (t2, HH, N))
    g('v_lshlrev_b32 v%d, 9, v%d' % (t0, t0))
    for i in range(8):
        g('v_xor_b32 v%d, %d, v%d' % (t1, 2 * i, t2))
        g('v_lshl_add_u32 v%d, v%d, 4, v%d' % (t1, t1, t0))
        g('v_add_u32 v%d, %d, v%d' % (DV2[i], 1024 * i - 1024 * (i & 3), t1))
    g('s_branch L1_wj')
    g.label('L1_w23')
    g.fence()
    g('s_cmp_eq_u32 s%d, 2' % sW)
    g('s_cselect_b32 s%d, 0, 8' % sT0)
    srd(g, SKV, 8, 8 * 2048 * 512)
    g('s_mov_b32 s%d, %d' % (sST1, 32 * 3584))
    g('s_lshl_b32 s%d, s%d, 20' % (sOKV, sKVH))
    g('s_add_u32 s%d, s%d, %d' % (sOKV, sOKV, 1536 * 512 - 16384))
    g('s_mul_i32 s%d, s%d, 224' % (sO1, sH))
    g('s_and_b32 s%d, s%d, 1' % (sT2, sW))
    g('s_lshl_b32 s%d, s%d, 4' % (sT2, sT2))
    g('s_mov_b32 s%d, 4682' % sIDX)
    g('v_mov_b32 v%d, 0x%x' % (t4, OOB))
    g('v_subrev_u32 v%d, s%d, v%d' % (t3, sT0, L))
    for i in range(8):
        g('v_add_u32 v%d, %d, v%d' % (t0, 64 * i, t3))
        g('v_cmp_gt_u32 vcc, 448, v%d' % t0)
        g('v_mul_u32_u24 v%d, s%d, v%d' % (t1, sIDX, t0))
        g('v_lshrrev_b32 v%d, 16, v%d' % (t1, t1))
        g('v_mul_u32_u24 v%d, %d, v%d' % (t1, 3584 - 224, t1))
        g('v_lshl_add_u32 v%d, v%d, 4, v%d' % (t1, t0, t1))
        g('v_subrev_u32 v%d, %d, v%d' % (t1, 1024 * (i & 3), t1))
        g('v_cndmask_b32 v%d, v%d, v%d, vcc' % (DV1[i], t4, t1))
    g('v_add_u32 v%d, s%d, v%d' % (t0, sT2, HH))
    for par in range(2):
        g('v_add_u32 v%d, %d, v%d' % (t1, 2 * par, HH))
        g('v_lshlrev_b32 v%d, 2, v%d' % (t1, t1))
        g('v_xor_b32 v%d, v%d, v%d' % (t1, t1, N))
        g('v_lshlrev_b32 v%d, 4, v%d' % (t1, t1))
        g('v_lshl_add_u32 v%d, v%d, 9, v%d' % (t1, t0, t1))
        for i in range(par, 8, 2):
            g('v_add_u32 v%d, %d, v%d' % (DV2[i], 1024 * i - 1024 * (i & 3), t1))
    g.label('L1_wj')
    g.fence()
    g('s_nop 1')

    def dma_items(stage):
        if stage < 14: dv, s, so, adv = DV1, S1, sO1, 's_add_u32 s%d, s%d, s%d' % (sO1, sO1, sST1)
        elif stage < 18: dv, s, so, adv = DV3, SWD, sOWD, ('s_add_u32 s%d, s%d, 256' % (sOWD, sOWD) if stage != 16 else 's_add_u32 s%d, s%d, s%d' % (sOWD, sOWD, sAD3))
        elif stage < 35: dv, s, so, adv = DV2, SKV, sOKV, 's_add_u32 s%d, s%d, 0x4000' % (sOKV, sOKV)
        else: dv, s, so, adv = DV3, SWO, sOWO, ['s_add_u32 s%d, s%d, 128' % (sOWO, sOWO), 's_cmp_eq_u32 s%d, s%d' % (sOWO, sWOE),
                                                's_cselect_b32 s%d, 896, 0' % sT2, 's_sub_u32 s%d, s%d, s%d' % (sOWO, sOWO, sT2)]
        items = []
        for i in range(8):
            def f(i=i):
                if stage == 18 and i == 0 and OPT['oobk'] & 2:
                    g('s_mov_b32 s75, s%d' % (SKV + 2)); g('s_cmp_lt_u32 s%d, 2' % sW); g('s_cselect_b32 s%d, s75, 0' % (SKV + 2))
                g('buffer_load_dwordx4 v%d, s[%d:%d], s%d offen offset:%d%s lds' % (dv[i], s, s + 3, so, 1024 * (i & 3), DFL), tag=('st', stage))
                if stage == 18 and i == 7 and OPT['oobk'] & 2: g('s_mov_b32 s%d, s75' % (SKV + 2))
                if i == 7:
                    for a_ in ([adv] if isinstance(adv, str) else adv): g(a_)
            def m(i=i):
                g('s_add_u32 m0, s%d, %d' % (sQB, (stage % 5) * 32768 + 1024 * i))
            items.append((m if i % 4 == 0 else None, f))
        return items
    def dma_now(stage):
        for m, f in dma_items(stage):
            if m: m()
            f()
    st(2)
    srd(g, SWO, 12, 4096 * 896)
    srd(g, SWD, 20, 1792 * 896)
    srd(g, SWS, 26, WS_SIZE)
    srd(g, SDBG, 24, 256)
    srd(g, SOUT, 22, 2048 * 896)
    g('s_or_b32 s%d, s2, s%d' % (sT0, sW))
    g('s_cmp_lg_u32 s%d, 0' % sT0)
    g('s_cbranch_scc1 L1_non')
    g.raw('    s_memrealtime s[74:75]')
    g.raw('    v_mov_b32 v%d, 0' % t1)
    g.raw('    s_waitcnt lgkmcnt(0)')
    g.raw('    s_or_b32 s74, s74, 1')
    g.raw('    v_mov_b32 v%d, s74' % t0)
    g.raw('    buffer_store_dword v%d, v%d, s[%d:%d], 0 offen sc1' % (t0, t1, SDBG, SDBG + 3))
    g.label('L1_non')
    g.vm.append(('non', set(), True))
    g.vm.pop()
    g('s_mov_b32 s%d, 0x3f803f80' % sONE)
    g('s_mov_b32 s%d, 0xffff0000' % sMASK)
    g('s_mov_b32 s%d, %s' % (sTHR, f2h(TTHR)))
    g('s_lshl_b32 s%d, s%d, 6' % (sSP, sH))
    g('s_add_u32 s%d, s%d, s%d' % (sSP, sSP, sT3))
    g('s_mul_i32 s%d, s%d, 28672' % (sSP, sSP))
    if SP_BASE: g('s_add_u32 s%d, s%d, 0x%x' % (sSP, sSP, SP_BASE))
    g('s_add_u32 s%d, s%d, 28672' % (sSPE, sSP))
    g('s_add_u32 s%d, s%d, 0x%x' % (sYP, sSP, YP_OFF))
    g('s_add_u32 s%d, s%d, 896' % (sWOE, sOWO))
    g('s_mul_i32 s%d, s%d, 37' % (sT0, sH))
    g('s_lshr_b32 s%d, s%d, 8' % (sT0, sT0))
    g('s_mul_i32 s%d, s%d, 7' % (sT0, sT0))
    g('s_sub_u32 s%d, s%d, s%d' % (sT0, sH, sT0))
    g('s_lshl_b32 s%d, s%d, 7' % (sT1, sT0))
    g('s_add_u32 s%d, s%d, s%d' % (sOWO, sOWO, sT1))
    g('s_lshl_b32 s%d, s%d, 12' % (sT1, sT0))
    g('s_add_u32 s%d, s%d, s%d' % (sSP, sSP, sT1))
    g('s_mul_i32 s%d, s%d, %d' % (sOWD, sH, 112 * 896))
    if OPT['oobk'] & 4: g('s_add_u32 s%d, s%d, %d' % (SWD + 2, sOWD, 112 * 896))
    g('s_and_b32 s%d, s%d, 1' % (sT1, sW))
    g('s_mul_i32 s%d, s%d, %d' % (sT1, sT1, 64 * 896))
    g('s_add_u32 s%d, s%d, s%d' % (sOWD, sOWD, sT1))
    g('s_lshr_b32 s%d, s%d, 1' % (sT1, sW))
    g('s_lshl_b32 s%d, s%d, 29' % (sAD3, sT1))
    g('s_add_u32 s%d, s%d, 256' % (sAD3, sAD3))
    g('s_lshl_b32 s%d, s%d, 7' % (sT1, sT1))
    g('s_add_u32 s%d, s%d, s%d' % (sOWD, sOWD, sT1))
    g('s_lshl_b32 s%d, s%d, 4' % (sFP, sT3))
    g('s_add_u32 s%d, s%d, s%d' % (sFP, sFP, sH))
    g('s_mul_i32 s%d, s%d, %d' % (sFP, sFP, FST))
    g('s_add_u32 s%d, s%d, 0x%x' % (sFP, sFP, FL_BASE))
    g('s_lshr_b32 s%d, s2, 3' % sI)
    g('s_sub_i32 s%d, s%d, 4' % (sCT, sI))
    g('s_max_i32 s%d, s%d, 0' % (sCT, sCT))
    g('s_mul_i32 s%d, s%d, 4682' % (sT0, sCT))
    g('s_lshr_b32 s%d, s%d, 16' % (sT0, sT0))
    g('s_mul_i32 s%d, s%d, 14' % (sT1, sT0))
    g('s_sub_u32 s%d, s%d, s%d' % (sCT, sCT, sT1))
    g('s_and_b32 s%d, s%d, 1' % (sT0, sT0))
    g('s_and_b32 s%d, s2, 7' % sT1)
    g('s_lshl_b32 s%d, s%d, 1' % (sT1, sT1))
    g('s_add_u32 s%d, s%d, s%d' % (sT0, sT0, sT1))
    g('s_lshl_b32 s%d, s%d, 2' % (sRO, sT0))
    g('s_add_u32 s%d, s%d, s%d' % (sRO, sRO, sW))
    g('s_mul_i32 s%d, s%d, %d' % (sFC, sRO, 16 * FST))
    g('s_add_u32 s%d, s%d, 0x%x' % (sFC, sFC, FL_BASE))
    g('s_mul_i32 s%d, s%d, 14' % (sPB, sRO))
    g('s_add_u32 s%d, s%d, s%d' % (sPB, sPB, sCT))
    g('s_lshl_b32 s%d, s%d, 11' % (sPB, sPB))
    if SP_BASE: g('s_add_u32 s%d, s%d, 0x%x' % (sPB, sPB, SP_BASE))
    g('s_mov_b32 s%d, 0xffff' % sPEND)
    g('s_mov_b32 s%d, 0' % sSPIN)
    g('s_mul_i32 s%d, s%d, %d' % (sXO, sRO, 32 * 896))
    g('s_lshl_b32 s%d, s%d, 6' % (sT0, sCT))
    g('s_add_u32 s%d, s%d, s%d' % (sXO, sXO, sT0))
    g('s_add_u32 s%d, s%d, 0x%x' % (sYB, sPB, YP_OFF))
    st(2)
    A0, A1, A2, A3 = T[4:8]
    def xread(cb):
        g.wait_tag(('x', cb), False)
        o = (cb // 2) * 32768 + (cb & 1) * 4096
        for tt in range(4):
            g('ds_read_b128 %s, v%d offset:%d' % (vr(X + 16 * cb + 4 * tt, 4), XR[o >> 16][tt], o & 0xffff))
    def stats(cb):
        for d in range(16):
            r = X + 16 * cb + d
            g('v_dot2c_f32_bf16 v%d, s%d, v%d' % ((A0, A1)[d & 1], sONE, r))
            g('v_dot2c_f32_bf16 v%d, v%d, v%d' % ((A2, A3)[d & 1], r, r))
    nx = XA; nd = 0
    def more(done):
        nonlocal nx, nd
        if nx < 7: xdma(nx); nx += 1
        if nx == 7:
            while nd < OPT['ndp'] and 2 * nd <= done: dma_now(nd); nd += 1
    more(0)
    xread(0)
    for cb in range(7):
        if cb < 6: more(cb)
        if cb < 6: xread(cb + 1)
        if cb == 0: st(2)
        if cb == 6: more(6); st(2)
        stats(cb)
    assert nx == 7 and nd == OPT['ndp']
    g('v_add_f32 v%d, v%d, v%d' % (A0, A0, A1))
    g('v_add_f32 v%d, v%d, v%d' % (A2, A2, A3))
    g('v_mov_b32 v%d, v%d' % (A1, A0))
    g('v_mov_b32 v%d, v%d' % (A3, A2))
    g('v_permlane32_swap_b32 v%d, v%d' % (A0, A1))
    g('v_permlane32_swap_b32 v%d, v%d' % (A2, A3))
    g('v_add_f32 v%d, v%d, v%d' % (A0, A0, A1))
    g('v_add_f32 v%d, v%d, v%d' % (A2, A2, A3))
    g('v_mul_f32 v%d, %s, v%d' % (A0, f2h(1.0 / 448), A0))
    g('v_mul_f32 v%d, %s, v%d' % (A2, f2h(1.0 / 448), A2))
    g('v_fma_f32 v%d, -v%d, v%d, v%d' % (A2, A0, A0, A2))
    g('v_max_f32 v%d, 0, v%d' % (A2, A2))
    g('v_add_f32 v%d, %s, v%d' % (A2, f2h(1e-5), A2))
    g('v_rsq_f32 v%d, v%d' % (A2, A2))
    g('v_mul_f32 v%d, %s, v%d' % (VA, f2h(CS), A2))
    g('v_mul_f32 v%d, -v%d, v%d' % (VBB, A0, VA))

    def norm_items(t):
        its = []
        for d in range(4):
            r = X + 4 * t + d
            a, b = T[2 * (d & 1)], T[2 * (d & 1) + 1]
            its += ['v_lshlrev_b32 v%d, 16, v%d' % (a, r),
                    'v_and_b32 v%d, s%d, v%d' % (b, sMASK, r),
                    'v_fma_f32 v%d, v%d, v%d, v%d' % (a, a, VA, VBB),
                    'v_fma_f32 v%d, v%d, v%d, v%d' % (b, b, VA, VBB),
                    'v_cvt_pk_bf16_f32 v%d, v%d, v%d' % (r, a, b)]
        return its
    g.wait_tag(('st', 0), False)
    g('s_barrier')
    st(3)

    M = []
    def tr(base, off): return [('ds_read_b64_tr_b16', 0, base, off[0]), ('ds_read_b64_tr_b16', 2, base, off[1])]
    idx = {}
    for s in range(14):
        bs, so = slot_off(s)
        for tt in range(2):
            t = 2 * s + tt
            idx[('p1', t)] = len(M)
            mq = []; mg = []
            for n in range(8):
                o = so + tt * 8192 + (n >> 2) * 256
                mq.append((s, tr(VB[bs][n & 3], (o, o + 2048)),
                          lambda af, n=n, t=t: MF(ar(16 * n, 16), vr(af, 4), vr(X + 4 * t, 4), ar(16 * n, 16) if t else '0')))
            for n in range(7):
                o = so + 16384 + 16 * tt * 224 + 32 * n
                mg.append((s, tr(VG[bs], (o, o + 4 * 224)),
                          lambda af, n=n, t=t: MF(ar(128 + 16 * n, 16), vr(af, 4), vr(X + 4 * t, 4), ar(128 + 16 * n, 16) if t else '0')))
            M += (mg + mq) if t == 27 else (mq + mg)
    kyp = len(M); idx['yp'] = kyp
    order = [(ct, ks) for ks in range(7) for ct in range(3)] + [(ct, ks) for ct in range(3, 14) for ks in range(7)]
    yfirst = {}; ylast = {}; hfirst = {}
    for ct, ks in order:
        s = 14 + ct // 4; bs, so = slot_off(s)
        o = so + ((ct >> 1) & 1) * 16384 + ks * 2048
        acc = YB[ct & 3]
        yfirst.setdefault(ct, len(M)); ylast[ct] = len(M); hfirst.setdefault(ks, len(M))
        M.append((s, tr(OB[bs][ct & 1], (o, o + 512)),
                  lambda af, acc=acc, ks=ks: MF(vr(acc, 16), vr(af, 4), vr(HF[ks], 4), vr(acc, 16) if ks else '0')))
    A0S = 18
    def add_qk(j):
        s = A0S + j; bs, so = slot_off(s); S = SB[j & 1]
        idx[('qk', j)] = len(M)
        for t in range(16):
            c = vr(S, 16) if t else ('0' if j < 2 else vr(NEGM, 16))
            M.append((s, [('ds_read_b128', 0, KB[bs][t & 7], so + (t >> 3) * 256)],
                      lambda af, t=t, S=S, c=c: MF(vr(S, 16), vr(af, 4), vr(Q + 4 * t, 4), c)))
    def add_pv(j):
        s = A0S + 1 + j; bs, so = slot_off(s)
        idx[('pv', j)] = len(M)
        for tt in range(2):
            for n in range(8):
                o = so + 16384 + tt * 8192 + (n >> 2) * 256
                c = '0' if (j == 0 and tt == 0) else ar(16 * n, 16)
                M.append((s, tr(VB[bs][n & 3], (o, o + 2048)),
                          lambda af, n=n, tt=tt, c=c: MF(ar(16 * n, 16), vr(af, 4), vr(PB[tt], 4), c)))
    add_qk(0)
    for j in range(15):
        add_qk(j + 1); add_pv(j)
    add_pv(15)
    for u in range(7):
        s = 35 + u; bs, so = slot_off(s)
        idx[('op', u)] = len(M)
        for t in range(16):
            for n in range(2):
                o = so + t * 2048
                acc = SACC[u & 1] + 16 * n
                M.append((s, tr(OB[bs][n], (o, o + 512)),
                          lambda af, acc=acc, t=t: MF(vr(acc, 16), vr(af, 4), vr(OF + 4 * t, 4), vr(acc, 16) if t else '0')))
    kt = len(M); o0 = idx[('op', 0)]
    def yq(i): return 128 + (64 + 4 * i) % 128
    for i in range(32):
        M.append((41, [], lambda af, i=i: MF(vr(YACC, 16), vr(IA[i & 1], 4), ar(yq(i), 4), vr(YACC, 16) if i else '0')))
    for i in range(32):
        M.append((41, [], lambda af, i=i: MF(vr(SA, 16), vr(IA[i & 1], 4), ar(4 * i, 4), vr(SA, 16) if i else '0')))
    NM = len(M)
    gaps = [[] for _ in range(NM + 1)]
    first = {}; last = {}
    for k, m in enumerate(M):
        first.setdefault(m[0], k); last[m[0]] = k
    bar_at = {}
    for s in range(NST - 1):
        bar_at[last[s] + 1 - OPT['barpos']] = s
    for t in range(27):
        k0 = idx[('p1', t)]
        spread(gaps, norm_items(t + 1), k0, k0 + 13)
    TA_, TB_, TD_ = 24, 25, 26
    def touch(n, srdn, so, flags=''):
        return ['v_min_u32 v%d, %d, v%d' % (TA_, (n - 1) * 16, VL16),
                'v_lshl_add_u32 v%d, v%d, 3, v%d' % (TA_, TA_, TB_),
                ('raw', 'buffer_load_dword v%d, v%d, s[%d:%d], %s offen%s' % (TD_, TA_, srdn, srdn + 3, so, flags))]
    if OPT['tw1']: gaps[OPT['tw1']] += [('call', lambda: wtouch(32 * OPT['tw0'], 14 - OPT['tw0']))]
    if OPT['twd'] >= 0:
        gaps[idx[('p1', OPT['twd'])] + 3] += ['s_lshl_b32 s%d, s%d, 2' % (sT0, sRL), 's_add_u32 s%d, s%d, s%d' % (sT0, sT0, sW), 's_mul_i32 s%d, s%d, %d' % (sT0, sT0, 1568 * F),
                     's_mul_i32 s%d, s%d, %d' % (sT1, sH, 112 * 896), 's_add_u32 s%d, s%d, s%d' % (sT0, sT0, sT1),
                     'v_mov_b32 v%d, 0' % TB_] + touch(13 * F, SWD, 's%d' % sT0)
    if OPT['tkv'] >= 0:
        gaps[idx[('p1', OPT['tkv'])] + 3] += ['s_lshl_b32 s%d, s%d, 1' % (sT0, sRL), 's_and_b32 s%d, s%d, 1' % (sT1, sH), 's_add_u32 s%d, s%d, s%d' % (sT0, sT0, sT1),
                     's_lshl_b32 s%d, s%d, 1' % (sT0, sT0), 's_and_b32 s%d, s%d, 1' % (sT1, sW), 's_add_u32 s%d, s%d, s%d' % (sT0, sT0, sT1),
                     's_mul_i32 s%d, s%d, %d' % (sT0, sT0, 4096 * F), 's_lshl_b32 s%d, s%d, 20' % (sT1, sKVH), 's_add_u32 s%d, s%d, s%d' % (sT0, sT0, sT1),
                     'v_mov_b32 v%d, 0x%x' % (TB_, 1536 * 512)] + touch(32 * F, SKV, 's%d' % sT0)
    if OPT['two'] >= 0:
        gaps[idx[('qk', OPT['two'])] + 3] += ['s_lshl_b32 s%d, s%d, 2' % (sT0, sRL), 's_add_u32 s%d, s%d, s%d' % (sT0, sT0, sW), 's_mul_i32 s%d, s%d, %d' % (sT0, sT0, 3584 * F),
                     's_mul_i32 s%d, s%d, %d' % (sT1, sH, 256 * 896), 's_add_u32 s%d, s%d, s%d' % (sT0, sT0, sT1),
                     'v_mov_b32 v%d, 0' % TB_] + touch(28 * F, SWO, 's%d' % sT0)
    if OPT.get('tc2', -1) >= 0:
        gaps[idx[('qk', OPT['tc2'])] + 5] += ['s_getpc_b64 s[74:75]', ('label', 'L1_pc2'), 's_lshr_b32 s%d, s2, 3' % sT0, 's_lshl_b32 s%d, s%d, 2' % (sT0, sT0),
                     's_add_u32 s%d, s%d, s%d' % (sT0, sT0, sW), 's_lshl_b32 s%d, s%d, 9' % (sT0, sT0),
                     'v_min_u32 v%d, 48, v%d' % (TA_, VL16), 'v_lshlrev_b32 v%d, 3, v%d' % (TA_, TA_), 'v_add_u32 v%d, s%d, v%d' % (TA_, sT0, TA_),
                     'v_min_u32 v%d, L1_last-L1_pc2, v%d' % (TA_, TA_), 'v_mov_b32 v%d, s75' % TB_, 'v_add_co_u32 v%d, vcc, s74, v%d' % (TA_, TA_),
                     'v_addc_co_u32 v%d, vcc, 0, v%d, vcc' % (TB_, TB_), ('raw', 'global_load_dword v%d, v[%d:%d], off' % (TD_, TA_, TB_))]
    def conv_items(dst, t, tmp):
        its = []
        base = 16 * (t >> 1) + 8 * (t & 1)
        for d in range(4):
            a, b = tmp[2 * (d & 1)], tmp[2 * (d & 1) + 1]
            its += ['v_accvgpr_read_b32 v%d, a%d' % (a, base + 2 * d),
                    'v_accvgpr_read_b32 v%d, a%d' % (b, base + 2 * d + 1),
                    'v_cvt_pk_bf16_f32 v%d, v%d, v%d' % (dst + 4 * t + d, a, b)]
        return its
    def h_items(n):
        its = []
        base = 128 + 16 * n
        for d in range(4):
            a, b, c, e = T[4 * (d & 1):4 * (d & 1) + 4]
            its += ['v_accvgpr_read_b32 v%d, a%d' % (a, base + 2 * d), 'v_accvgpr_read_b32 v%d, a%d' % (b, base + 8 + 2 * d),
                    'v_accvgpr_read_b32 v%d, a%d' % (c, base + 2 * d + 1), 'v_accvgpr_read_b32 v%d, a%d' % (e, base + 8 + 2 * d + 1),
                    'v_mul_f32 v%d, v%d, v%d' % (a, a, b), 'v_mul_f32 v%d, v%d, v%d' % (c, c, e),
                    'v_cvt_pk_bf16_f32 v%d, v%d, v%d' % (HF[n] + d, a, c)]
        return its
    direct = [int(x) for x in str(OPT['direct']).split(',')]
    parked = [ct for ct in range(14) if ct not in direct]
    assert len(parked) <= 8
    def yst(src, ct, q):
        return ('seq', ['s_add_u32 s%d, s%d, %d' % (sT0, sYP, (ct >> 1) * 4096),
                ('y', 'buffer_store_dwordx4 %s, v%d, s[%d:%d], s%d offen offset:%d%s' % (src, VL16, SWS, SWS + 3, sT0, (ct & 1) * 2048 + q * 1024, STF))])
    def yepi(ct):
        acc = YB[ct & 3]; its = []
        for d in range(8):
            if ct in direct:
                its.append('v_cvt_pk_bf16_f32 v%d, v%d, v%d' % (acc + d, acc + 2 * d, acc + 2 * d + 1))
                if d & 3 == 3: its.append(yst(vr(acc + d - 3, 4), ct, d >> 2))
            else:
                its += ['v_cvt_pk_bf16_f32 v%d, v%d, v%d' % (T[4 + (d & 3)], acc + 2 * d, acc + 2 * d + 1)]
                if d & 1: its += ['v_accvgpr_write_b32 a%d, v%d' % (128 + 8 * parked.index(ct) + d - 1, T[4 + ((d - 1) & 3)]),
                                  'v_accvgpr_write_b32 a%d, v%d' % (128 + 8 * parked.index(ct) + d, T[4 + (d & 3)])]
        return its
    k27 = idx[('p1', 27)]; kq0 = idx[('qk', 0)]
    qh = [(k27 + n + 2, hfirst[n], x) for n in range(7) for x in h_items(n)]
    def ydead(ct): return yfirst[ct + 4] if ct + 4 < 14 else (kq0 if (ct & 3) == 0 else idx[('qk', 1)] if (ct & 3) == 1 else idx[('qk', 1)] + 5)
    qe = [(ylast[ct] + 2, ydead(ct), x) for ct in range(14) for x in yepi(ct)]
    qq = [(kyp + 2, kq0 + t, x) for t in range(16) for x in conv_items(Q, t, T[0:4])]
    k = k27
    while qh or qe or qq:
        n = OPT['vq'] + (1 if qh else 0)
        while n > 0 or (qh and qh[0][1] <= k + 1) or (qe and qe[0][1] <= k + 1) or (qq and qq[0][1] <= k + 1):
            q_ = None
            if qh: q_ = qh if qh[0][0] <= k else None
            elif qq and qq[0][1] <= k + 2: q_ = qq
            elif qe and qe[0][0] <= k: q_ = qe
            elif qq: q_ = qq
            if not q_: break
            e, dl, x = q_.pop(0)
            assert e <= k < dl, (e, k, dl, x)
            gaps[k].append(x); n -= 1
        k += 1
    sys.stderr.write('conv sched ends at qk0%+d\n' % (k - kq0))
    kk = kq0 + 12
    for ct in parked:
        for q in range(2):
            gaps[kk].append(yst(ar(128 + 8 * parked.index(ct) + 4 * q, 4), ct, q)); kk += OPT['ypace']
    def exp_items(S, lo, P, sub=False):
        its = []
        for i in range(lo, lo + 8, 2):
            if sub:
                its += ['v_sub_f32 v%d, v%d, v%d' % (S + i, S + i, VMX), 'v_sub_f32 v%d, v%d, v%d' % (S + i + 1, S + i + 1, VMX)]
            its += ['v_exp_f32 v%d, v%d' % (S + i, S + i), 'v_exp_f32 v%d, v%d' % (S + i + 1, S + i + 1),
                    'v_add_f32 v%d, v%d, v%d' % (VL, VL, S + i), 'v_add_f32 v%d, v%d, v%d' % (VL, VL, S + i + 1),
                    'v_cvt_pk_bf16_f32 v%d, v%d, v%d' % (P + (i - lo) // 2, S + i, S + i + 1)]
        return its
    def max_items(S, dst):
        its = ['v_max3_f32 v%d, v%d, v%d, v%d' % (dst, S, S + 1, S + 2)]
        for i in range(3, 15, 2):
            its.append('v_max3_f32 v%d, v%d, v%d, v%d' % (dst, dst, S + i, S + i + 1))
        its.append('v_max_f32 v%d, v%d, v%d' % (dst, dst, S + 15))
        return its
    assert k <= idx[('qk', 1)] + 2
    vccbusy = set()
    for j in range(16):
        S = SB[j & 1]
        kb = idx[('pv', j)]
        if j == 0:
            ka = idx[('qk', 1)]
            its = max_items(S, VMX) + ['v_mov_b32 v%d, v%d' % (T[4], VMX), 'v_permlane32_swap_b32 v%d, v%d' % (VMX, T[4]),
                                       'v_max_f32 v%d, v%d, v%d' % (VMX, VMX, T[4])]
            spread(gaps, its, ka + 2, ka + 5)
            spread(gaps, exp_items(S, 0, PB[0], True), ka + 6, ka + 14)
            spread(gaps, exp_items(S, 8, PB[1], True), ka + 15, kb + 6)
            its = ['v_sub_f32 v%d, v%d, v%d' % (SB[1] + i, SB[1] + i, VMX) for i in range(16)]
            its += ['v_sub_f32 v%d, 0, v%d' % (NEGM + i, VMX) for i in range(16)]
            spread(gaps, its, kb + 3, kb + 11)
            spread(gaps, max_items(SB[1], T[5]), kb + 12, kb + 14)
        elif j < 15:
            ka = idx[('qk', j + 1)]
            spread(gaps, exp_items(S, 0, PB[0]), ka, ka + 9)
            spread(gaps, exp_items(S, 8, PB[1]), ka + 10, kb + 5)
            spread(gaps, max_items(SB[(j + 1) & 1], T[5]), kb + 6, kb + 14)
        else:
            gaps[kb - 1] += exp_items(S, 0, PB[0])
            spread(gaps, exp_items(S, 8, PB[1]), kb, kb + 6)
        if j < 15:
            gaps[kb + 14].append('v_cmp_lt_f32 vcc, s%d, v%d' % (sTHR, T[5]))
            gaps[kb + 15].insert(0, ('rare', j + 1))
            vccbusy.add(kb + 14)
    def vok(k): return k + 1 if k in vccbusy else k
    k5 = idx[('qk', 3)]
    its = ['v_mov_b32 v%d, 0' % VPOLL, 'buffer_load_dword v%d, v%d, s[%d:%d], 0 offen sc1' % (VNON, VPOLL, SDBG, SDBG + 3),
           'v_lshrrev_b32 v%d, 4, v%d' % (T[6], VL16),
           'v_cmp_gt_u32 vcc, %d, v%d' % (OPT.get('fw', 32), T[6]),
           'v_mov_b32 v%d, 0x%x' % (T[7], OOB),
           'v_lshlrev_b32 v%d, 2, v%d' % (T[8], T[6]),
           'v_and_b32 v%d, 15, v%d' % (VFL, T[6]),
           'v_cndmask_b32 v%d, v%d, v%d, vcc' % (VFO, T[7], T[8]),
           'v_mul_u32_u24 v%d, %d, v%d' % (VFL, FST, VFL),
           'v_and_b32 v%d, 31, v%d' % (T[7], T[6]), 'v_mul_u32_u24 v%d, 896, v%d' % (T[7], T[7]),
           'v_and_b32 v%d, 32, v%d' % (T[8], T[6]), 'v_add_u32 v%d, v%d, v%d' % (VXO, T[7], T[8])]
    spread(gaps, its, k5, k5 + 12)
    kp = vok(kk - OPT['ypace'] + OPT['ypd'])
    assert kp > k5 + 40
    gaps[kp] += [('nonce',), ('waittag', 'y'), 'buffer_store_dword v%d, v%d, s[%d:%d], s%d offen sc1' % (VNON, VFO, SWS, SWS + 3, sFP)]
    gaps[kp + OPT['yfl']] += ['buffer_load_dword v%d, v%d, s[%d:%d], s%d offen sc1' % (VPOLL, VFL, SWS, SWS + 3, sFC)]
    kq = vok(kp + OPT['yfl'] + OPT['ychk'])
    sys.stderr.write('ypub at iter %.1f, ychk at iter %.1f\n' % ((kp - kq0 - 16) / 32, (kq - kq0 - 16) / 32))
    gaps[kq] += [('poll', 'h', 0)]
    def pl(dst, so, off): return 'buffer_load_dwordx4 %s, v%d, s[%d:%d], s%d offen offset:%d sc1' % (ar(dst, 4), VL16, SWS, SWS + 3, so, off)
    lo, hi = kq + 1, o0 + OPT['yend']
    for i in range(32):
        gaps[lo + i * (hi - lo) // 32] += [pl(yq(i), sYB, (i & 1) * 1024)] + (['s_add_u32 s%d, s%d, %d' % (sYB, sYB, HS)] if i & 1 else [])
    g0 = idx[('pv', 15)] + 10
    its = [x for t in range(16) for x in conv_items(OF, t, T[0:4])]
    quota(gaps, its[:48], g0, 8)
    quota(gaps, its[48:], g0 + 6, 6)
    gaps[o0 + 26] += ['v_mov_b32 v%d, v%d' % (T[4], VL), 'v_mov_b32 v%d, v%d' % (T[5], VL)]
    gaps[o0 + 27] += ['v_permlane32_swap_b32 v%d, v%d' % (T[4], T[5])]
    gaps[o0 + 28] += ['v_add_f32 v%d, v%d, v%d' % (T[4], T[4], T[5])]
    gaps[o0 + 29] += ['v_rcp_f32 v%d, v%d' % (VRI, T[4])]
    its = ['s_lshr_b32 s%d, s%d, 1' % (sT1, sCT), 's_add_u32 s%d, s%d, 21' % (sT1, sT1),
           'v_bfe_u32 v%d, v%d, 4, 4' % (T[8], VL16),
           'v_sub_u32 v%d, s%d, v%d' % (VSTEP, sT1, T[8]),
           'v_mul_u32_u24 v%d, 37, v%d' % (VNEED, VSTEP),
           'v_lshrrev_b32 v%d, 8, v%d' % (VNEED, VNEED),
           'v_mul_u32_u24 v%d, 7, v%d' % (VNEED, VNEED),
           'v_sub_u32 v%d, v%d, v%d' % (VSTEP, VSTEP, VNEED),
           'v_add3_u32 v%d, v%d, v%d, 1' % (VNEED, VSTEP, VNON),
           's_add_u32 s%d, s%d, 128' % (sFC, sFC), 's_add_u32 s%d, s%d, 128' % (sFP, sFP)]
    spread(gaps, its, o0 + 48, o0 + 60)
    its = ['v_lshrrev_b32 v%d, 4, v%d' % (T[6], VL16),
           'v_lshrrev_b32 v%d, 3, v%d' % (T[7], T[6]),
           'v_xor_b32 v%d, v%d, v%d' % (T[7], T[7], T[6]),
           'v_and_b32 v%d, 4, v%d' % (T[7], T[7]),
           'v_lshlrev_b32 v%d, 1, v%d' % (T[7], T[7]),
           'v_bfe_u32 v%d, v%d, 3, 2' % (T[8], T[6]),
           'v_lshl_or_b32 v%d, v%d, 1, v%d' % (T[7], T[8], T[7]),
           'v_bfe_u32 v%d, v%d, 1, 1' % (T[8], T[6]),
           'v_or_b32 v%d, v%d, v%d' % (T[7], T[7], T[8]),
           'v_and_b32 v%d, 1, v%d' % (T[8], T[6]),
           'v_lshlrev_b32 v%d, 4, v%d' % (T[8], T[8]),
           'v_mov_b32 v%d, 0x3f80' % T[6],
           'v_lshlrev_b32 v%d, v%d, v%d' % (T[8], T[8], T[6])]
    for d in range(8):
        its += [('seq', ['v_cmp_eq_u32 vcc, %d, v%d' % (d, T[7]), 'v_cndmask_b32 v%d, 0, v%d, vcc' % (IA[0] + d, T[8])])]
    spread(gaps, its, o0 + 80, o0 + 94)
    def epi_items(u):
        its = []
        for n in range(2):
            acc = SACC[u & 1] + 16 * n
            for q in range(2):
                for d in range(4):
                    i = acc + 8 * q + 2 * d
                    its += ['v_mul_f32 v%d, v%d, v%d' % (i, i, VRI), 'v_mul_f32 v%d, v%d, v%d' % (i + 1, i + 1, VRI),
                            'v_cvt_pk_bf16_f32 v%d, v%d, v%d' % (ST + 8 * n + 4 * q + d, i, i + 1)]
                its.append(('tag', ('s', u), 'buffer_store_dwordx4 %s, v%d, s[%d:%d], s%d offen offset:%d%s' % (vr(ST + 8 * n + 4 * q, 4), VL16, SWS, SWS + 3, sSP, n * 2048 + q * 1024, STF)))
        if u < 6:
            its += [('seq', ['s_add_u32 s%d, s%d, 4096' % (sSP, sSP), 's_cmp_eq_u32 s%d, s%d' % (sSP, sSPE),
                    's_cselect_b32 s%d, 28672, 0' % sT0, 's_sub_u32 s%d, s%d, s%d' % (sSP, sSP, sT0)])]
        return its
    gaps[kt - 1].append(('noty',))
    spub = 'buffer_store_dword v%d, v%d, s[%d:%d], s%d offen sc1' % (VNON, VFO, SWS, SWS + 3, sFP)
    def sfl(u): return 'buffer_load_dword v%d, v%d, s[%d:%d], s%d offen sc1' % (VP2[u & 1], VFL, SWS, SWS + 3, sFC)
    LS = {k: [o0 + int(x) for x in str(OPT[k]).split(',')] for k in ('pub', 'fl', 'chk')}
    npub_pre = 0
    for u in range(7):
        k0 = o0 + 32 * (u + 1)
        spread(gaps, epi_items(u), k0 + (1 if u < 6 else 0), k0 + (OPT['epw'] if u < 6 else 6))
        if LS['pub'][u] < kt: npub_pre += 1
        gaps[LS['pub'][u]] += ['v_add_u32 v%d, 1, v%d' % (VNON, VNON), ('waittag', ('s', u)), spub]
    def rdy(vp): return ['v_sub_u32 v%d, v%d, v%d' % (vp, vp, VNEED), 'v_cmp_ge_u32 vcc, 7, v%d' % vp, 's_and_b32 s%d, vcc_lo, s%d' % (sRDY, sPEND)]
    def take(r0, r1):
        return ['s_ff1_i32_b32 s%d, s%d' % (sHA, sRDY), 's_bitset0_b32 s%d, s%d' % (sRDY, sHA), 's_bitset0_b32 s%d, s%d' % (sPEND, sHA),
                's_min_u32 s%d, s%d, 255' % (sHA, sHA), 's_mul_i32 s%d, s%d, %d' % (sHA, sHA, HS), 's_add_u32 s%d, s%d, s%d' % (sHA, sHA, sPB)] + \
               ['buffer_load_dwordx4 %s, v%d, s[%d:%d], s%d offen offset:%d sc1' % (r, VL16, SWS, SWS + 3, sHA, o) for r, o in ((r0, 0), (r1, 1024))]
    nfl = 0
    for gi in range(4):
        kl = LS['chk'][gi]
        if LS['fl'][gi] > o0:
            nfl += 1
            gaps[LS['fl'][gi]] += [sfl(nfl)]
            gaps[kl] += rdy(VP2[nfl & 1])
        for j in range(4):
            its = take(ar(32 * gi + 8 * j, 4), ar(32 * gi + 8 * j + 4, 4))
            if kl < kt:
                th = OPT['thin']
                gaps[kl + 1 + 2 * th * j] += its[:6]; gaps[kl + 2 + 2 * th * j] += its[6:7]; gaps[kl + 2 + th + 2 * th * j] += its[7:]
            else:
                assert kl + j < kt + 32 + 8 * gi + 2 * j
                gaps[kl + j] += its
    gaps[o0 + OPT['flt']] += [sfl(0)]
    ks_ = LS['chk'][-1]
    gaps[o0 + 110] += ['buffer_load_dwordx4 %s, v%d, s[%d:%d], s%d offen' % (vr(XF[0], 4), VXO, SX, SX + 3, sXO),
                       'buffer_load_dwordx4 %s, v%d, s[%d:%d], s%d offen offset:16' % (vr(XF[1], 4), VXO, SX, SX + 3, sXO)]
    Y = YACC; E = 112; XX = 0
    its = ['s_mov_b32 s%d, %s' % (sT3, f2h(KINV)), 's_mov_b32 s%d, %s' % (sT4, f2h(-KINV * math.log2(math.e)))]
    for d in range(8):
        its += ['v_lshlrev_b32 v%d, 16, v%d' % (XX + 2 * d, XF[d >> 2] + (d & 3)), 'v_and_b32 v%d, s%d, v%d' % (XX + 2 * d + 1, sMASK, XF[d >> 2] + (d & 3))]
    spread(gaps, its, kt + 12, kt + 20)
    its = ['v_mul_f32 v%d, s%d, v%d' % (E + i, sT4, Y + i) for i in range(16)]
    its += ['v_exp_f32 v%d, v%d' % (E + i, E + i) for i in range(16)]
    for i in range(16): its += ['v_mul_f32 v%d, s%d, v%d' % (Y + i, sT3, Y + i), 'v_add_f32 v%d, 1.0, v%d' % (E + i, E + i)]
    its += ['v_rcp_f32 v%d, v%d' % (E + i, E + i) for i in range(16)]
    its += ['v_mul_f32 v%d, v%d, v%d' % (Y + i, Y + i, E + i) for i in range(16)]
    spread(gaps, its, kt + 33, kt + 46)

    def emit_reads(k):
        s, rd, fn = M[k]
        assert s in certified, (k, s)
        af = AF[k % PF]
        for mn, w, base, off in rd:
            width = 4 if mn.endswith('b128') else 2
            g('%s %s, v%d offset:%d' % (mn, vr(af + w, width), base, off))
    certified = {0}
    dmaq = [x for s_ in range(OPT['ndp'], 4) for x in dma_items(s_)]
    for k in range(PF): emit_reads(k)
    for s in norm_items(0): g(s)
    since = 0
    stamp_at = {idx[('p1', 14)], kyp, idx[('qk', 0)], idx[('qk', 4)], idx[('qk', 8)], o0, kt}
    for x in str(OPT.get('tout', '')).split(','):
        if x: gaps[o0 + int(x)] += ['v_mov_b32 v%d, 0' % TA_, ('raw', 'buffer_load_dword v%d, v%d, s[%d:%d], s%d offen' % (TD_, TA_, SOUT, SOUT + 3, sXO))]
    if OPT.get('stk'): stamp_at = {o0 + int(x) for x in OPT['stk'].split(',')}
    if OPT.get('stp'): stamp_at = {int(x) for x in OPT['stp'].split(',')}
    stamp4 = {0, idx[('qk', 0)], o0, kt}
    rare_sites = []
    oolines = []
    def spin(name, back, vp, vn, load):
        o = oolines
        o.append('%s:' % name)
        if vn:
            o.append('    s_cmp_lt_u32 s%d, 4' % sI)
            o.append('    s_cbranch_scc1 %s' % back)
        o.append('    s_mov_b32 s%d, 0' % sSPIN)
        o.append('%s_l:' % name)
        o.append('    s_sleep 2')
        o.append('    ' + load)
        o.append('    s_add_u32 s%d, s%d, 1' % (sSPIN, sSPIN))
        o.append('    s_cmp_gt_u32 s%d, %d' % (sSPIN, SPIN_MAX))
        o.append('    s_cbranch_scc1 %s' % back)
        o.append('    s_waitcnt vmcnt(0)')
        for x in (vp if isinstance(vp, list) else [vp]):
            o.append('    ' + x)
            o.append('    s_nop 1')
        o.append('    s_cbranch_vccnz %s_l' % name)
        o.append('    s_branch %s' % back)
    for k in range(NM):
        s, rd, fn = M[k]
        if k in stamp_at: st(1)
        if k in stamp4: st(4); st(4, real=True)
        if k % 2 == 0 and k + 1 < NM:
            a = AF[(k + 1) % PF]
            g.wait_regs(['v%d' % (a + 3), 'v%d' % (a + 1)])
        g(fn(AF[k % PF]))
        if k in bar_at:
            sb = bar_at[k]
            assert len(dmaq) <= 16
            g.wait_tag(('st', sb + 1), False)
            if not (OPT.get('xbar') and sb >= 2): g('s_barrier')
            certified.add(sb + 1)
            if sb + 4 < NST and not (OPT.get('xdma') and sb >= 1): dmaq += dma_items(sb + 4)
            since = OPT['dmaper']
        dma = None
        since += 1
        if dmaq and (since >= (OPT['dmaper'] if k < o0 else OPT['dmo']) or len(dmaq) > 8):
            dma = dmaq.pop(0); since = 0
            if dma[0]: dma[0]()
        if k + PF < NM: emit_reads(k + PF)
        if dma: dma[1]()
        for it in gaps[k]:
            if isinstance(it, str):
                if OPT.get('xvalu') and it.startswith('v_') and (k < k27 - 15 or idx[('qk', 4)] <= k < idx[('pv', 14)]) and 'v_cmp' not in it and ('v%d,' % TA_) not in it and ('v%d,' % TB_) not in it: continue
                g(it); continue
            if it[0] == 'rare':
                j = it[1]
                g('s_cbranch_vccnz L1_tr%d' % j)
                g.label('L1_bk%d' % j)
                rare_sites.append(j)
            elif it[0] == 'tag': g(it[2], tag=it[1])
            elif it[0] == 'label': g.label(it[1])
            elif it[0] == 'raw':
                g('s_nop 0'); g.raw('    ' + it[1]); g.pos += 1; g.vm.append((None, {'v%d' % TD_}, False))
            elif it[0] == 'waittag': g.wait_tag(it[1], False)
            elif it[0] == 'nonce':
                c = 'v_cmp_eq_u32 vcc, 0, v%d' % VNON
                g(c); g('s_nop 1'); g('s_cbranch_vccnz L1_spn'); g.label('L1_spn_b')
                spin('L1_spn', 'L1_spn_b', c, None, 'buffer_load_dword v%d, v%d, s[%d:%d], 0 offen sc1' % (VNON, VPOLL, SDBG, SDBG + 3))
            elif it[0] == 'poll':
                vp, vn = VPOLL, VNON
                c = 'v_cmp_ne_u32 vcc, v%d, v%d' % (vp, vn)
                nm = 'L1_sp' + it[1]
                g(c); g('s_nop 1'); g('s_cbranch_vccnz ' + nm); g.label(nm + '_b')
                spin(nm, nm + '_b', c, True, 'buffer_load_dword v%d, v%d, s[%d:%d], s%d offen sc1' % (vp, VFL, SWS, SWS + 3, sFC))
            elif it[0] == 'call': it[1]()
            elif it[0] == 'seq':
                for x in it[1]: (g(x) if isinstance(x, str) else g(x[1], tag=x[0]))
            elif it[0] == 'noty':
                g('s_cmp_lt_u32 s%d, 4' % sI)
                g('s_cbranch_scc1 L1_noty')
                nst_noty = st.n
    st(1)
    for x in rdy(VP2[0]): g(x)
    g('s_mov_b32 s%d, 0' % sSPIN)
    R = g.raw
    for r in range(16):
        R('    s_cmp_eq_u32 s%d, 0' % sPEND)
        R('    s_cbranch_scc1 L1_sum%d' % r)
        R('L1_r%d:' % r)
        R('    s_cmp_lg_u32 s%d, 0' % sRDY)
        R('    s_cbranch_scc1 L1_g%d' % r)
        if OPT['slp']: R('    s_sleep %d' % OPT['slp'])
        if OPT['pmask']:
            R('    s_mov_b32 exec_lo, s%d' % sPEND)
            R('    s_mov_b32 exec_hi, 0')
        R('    ' + sfl(0))
        if OPT['pmask']: R('    s_mov_b64 exec, -1')
        R('    s_add_u32 s%d, s%d, 1' % (sSPIN, sSPIN))
        R('    s_cmp_gt_u32 s%d, %d' % (sSPIN, SPIN_MAX))
        R('    s_cbranch_scc1 L1_sum%d' % r)
        R('    s_waitcnt vmcnt(0)')
        for x in rdy(VP2[0]): R('    ' + x); R('    s_nop 1')
        R('    s_branch L1_r%d' % r)
        R('L1_g%d:' % r)
        for x in take(vr(128 + 8 * r, 4), vr(132 + 8 * r, 4)): R('    ' + x)
    for r in range(16, -1, -1):
        R('L1_sum%d:' % r)
        if r:
            R('    s_waitcnt vmcnt(0)')
            for q in range(2): R('    ' + MF(vr(SA, 16), vr(IA[q], 4), vr(128 + 8 * (r - 1) + 4 * q, 4), vr(SA, 16)))
    g.vm = []; g.fence()
    g('s_nop 15')
    for i in range(16): g('v_fma_f32 v%d, v%d, v%d, v%d' % (XX + i, Y + i, SA + i, XX + i))
    for d in range(8): g('v_cvt_pk_bf16_f32 v%d, v%d, v%d' % (E + d, XX + 2 * d, XX + 2 * d + 1))
    g('buffer_store_dwordx4 %s, v%d, s[%d:%d], s%d offen' % (vr(E, 4), VXO, SOUT, SOUT + 3, sXO))
    g('buffer_store_dwordx4 %s, v%d, s[%d:%d], s%d offen offset:16' % (vr(E + 4, 4), VXO, SOUT, SOUT + 3, sXO))
    st(5); st(real=True)
    st.dump(g, SWS, 2, STAMP_BASE, T[0])
    g.label('L1_end')
    g('s_endpgm')
    r = Gen()
    r.label('L1_noty')
    r('s_nop 15')
    for it in epi_items(6): r(it if isinstance(it, str) else it[2])
    r('v_add_u32 v%d, %d, v%d' % (VNON, 7 - npub_pre, VNON))
    r.waitall()
    r(spub)
    if OPT['stamp']:
        for i in range(nst_noty, st.n): r('s_memrealtime s[%d:%d]' % (sSTAMP + 2 * i, sSTAMP + 2 * i + 1))
        st.dump(r, SWS, 2, STAMP_BASE, T[0])
    r('s_endpgm')
    g.out += r.out + oolines
    for j in rare_sites:
        g.label('L1_tr%d' % j)
        g.raw('    s_mov_b32 s%d, %d' % (sIDX, j))
        g.raw('    s_branch L1_rare%d' % (j & 1))
    for par in range(2):
        r = Gen()
        S = SB[par]
        r.label('L1_rare%d' % par)
        r('s_nop 15')
        r('v_mov_b32 v%d, v%d' % (T[4], T[5]))
        r('v_permlane32_swap_b32 v%d, v%d' % (T[5], T[4]))
        r('v_max3_f32 v%d, v%d, v%d, 0' % (T[5], T[5], T[4]))
        r('v_exp_f32 v%d, -v%d' % (T[4], T[5]))
        for i in range(16):
            r('v_sub_f32 v%d, v%d, v%d' % (S + i, S + i, T[5]))
            r('v_sub_f32 v%d, v%d, v%d' % (NEGM + i, NEGM + i, T[5]))
        r('v_mul_f32 v%d, v%d, v%d' % (VL, VL, T[4]))
        for i in range(128):
            tt = T[i & 1]
            r('v_accvgpr_read_b32 v%d, a%d' % (tt, i))
            r('v_mul_f32 v%d, v%d, v%d' % (tt, tt, T[4]))
            r('v_accvgpr_write_b32 a%d, v%d' % (i, tt))
        r('s_nop 3')
        js = [j for j in rare_sites if (j & 1) == par]
        for j in js[:-1]:
            r('s_cmp_eq_u32 s%d, %d' % (sIDX, j))
            r('s_cbranch_scc1 L1_bk%d' % j)
        if par: r.label('L1_last')
        r('s_branch L1_bk%d' % js[-1])
        g.out += r.out
    sys.stderr.write('K1: %d mfma, nops %d, counts %s\n' % (NM, g.nnop, g.count))
    return g.out

def main():
    out = []
    hdr = open('cdna_kernels/%s.s.ref' % NAME).read().split('\n')
    for l in hdr:
        if l.startswith('; @launch'): break
        out.append(l)
    nm = NAME + '_kernel'
    out.append('; @launch grid=(256,1,1) block=(256,1,1) lds=163840')
    out.append('.amdgcn_target "amdgcn-amd-amdhsa--gfx950"')
    out.append('.text')
    out += ['.globl %s' % nm, '.p2align 8', '.type %s,@function' % nm]
    out += gen_k1()
    out.append('.section .rodata,"a"')
    out += ['.p2align 6', '.amdhsa_kernel %s' % nm, '  .amdhsa_next_free_vgpr 512', '  .amdhsa_next_free_sgpr 102',
            '  .amdhsa_accum_offset 256', '  .amdhsa_group_segment_fixed_size 0', '  .amdhsa_kernarg_size 96',
            '  .amdhsa_user_sgpr_count 2', '  .amdhsa_user_sgpr_kernarg_segment_ptr 1',
            '  .amdhsa_system_sgpr_workgroup_id_x 1', '.end_amdhsa_kernel']
    open(sys.argv[1], 'w').write('\n'.join(out) + '\n')
main()
```

```python
import sys, struct, math
from asmlib import *

def f2h(x): return '0x%08x' % struct.unpack('<I', struct.pack('<f', x))[0]

NAME = 'recurrent_scan__sliding_block_cached__glu_gated_bilinear__prompt'
OPT = dict(oobk=7, stamp=0, tcode=1, grp='x0123456', pf=6, dmaper=3, barpos=8, hx=2, wsoff=0, tw1=1, tw0=5, xa=4, tx=0, slp=0, pmask=1, thin=3, ndp=4, twd=6, tkv=16, two=9, epw=12, dmo=1, vq=6,
           direct='0,1,2,5,8,11', ypace=11, ypd=40, yfl=20, ychk=90, yend=0,
           pub='110,142,174,206,222,232,233', fl='231,0,0,0', chk='234,238,242,246', flt=250, fst=256)
for a in sys.argv[2:]:
    k, v = a.split('=')
    OPT[k] = int(v) if v.lstrip('-').isdigit() else v
STF = {0: ' sc1', 1: '', 2: ' sc0 sc1', 3: ' sc1 nt', 4: ' nt'}[OPT.get('stf', 0)]

DFL = {0: '', 1: ' nt', 2: ' sc1', 3: ' sc0', 4: ' sc0 sc1'}[OPT.get('dfl', 0)]
CS = math.log2(math.e) / 16.0
KINV = 1.0 / (CS * CS)
SP_BASE = OPT['wsoff'] << 20
YP_OFF = 0x1C00000
FL_BASE = SP_BASE + 0x3800000
STAMP_BASE = 0x3E00000
FST = OPT.get('fst', 4352)
WS_SIZE = 268435456
OOB = 0x40000000
TTHR = 24.0
SPIN_MAX = 1 << 17

PF = OPT['pf']
AF = [4 * i for i in range(PF)]
DV1 = list(range(28, 36)); DV2 = list(range(36, 44)); DV3 = list(range(44, 52))
VB = [[52 + 4 * s + i for i in range(4)] for s in range(3)]
VG = [64, 65, 66]
OB = [[67 + 2 * s + i for i in range(2)] for s in range(3)]
KB = [[73 + 8 * s + i for i in range(8)] for s in range(3)]
VL16 = 97; VL = 98; VA = 99; VBB = 100; VMX = 101; VRI = 102
VFO = 99; VFL = 100
T = list(range(103, 112))
NEGM = 112; ST = 112
X = 128; Q = 128; SB = [192, 208]; PB = [224, 228]
VNON = 28; VPOLL = 29; VP2 = [30, 31]; VNEED = 32; VSTEP = 33; VXO = 101
OF = 128; SACC = [192, 224]
HF = [24, 28, 32, 112, 116, 120, 124]; YB = [192, 208, 224, 240]
YACC = 76; SA = 36; XF = [60, 92]; IA = [52, 56]
HS = 64 * 28672
SX, S1, SKV, SWO, SWD, SWS, SDBG, SOUT = 28, 32, 36, 40, 44, 48, 4, 8
sW, sH, sRT, sKVH, sO1, sST1, sOKV, sOWO, sQB = 52, 53, 54, 55, 56, 57, 58, 59, 60
sT0, sT1, sT2, sONE, sMASK, sTHR, sIDX, sSP, sYP, sAD3, sT3, sT4 = 61, 62, 63, 64, 65, 66, 67, 68, 69, 70, 71, 72
sI, sCT, sRO, sOWD, sFP, sFC, sYB, sPB, sXO, sNON, sSPIN = 12, 13, 14, 15, 16, 17, 18, 19, 20, 21, 22
sWOE, sSPE, sPEND = 23, 24, 25
sRDY, sHA = 26, 27
sTC, sTS, sTI, sRL = 73, 100, 101, 3
sSTAMP = 76
CL = 5
NST = 42

def slot_off(stage):
    s = stage % 5
    return s // 2, (s % 2) * 32768

def srd(g, d, p, size):
    g('s_mov_b32 s%d, s%d' % (d, p))
    g('s_and_b32 s%d, s%d, 0xffff' % (d + 1, p + 1))
    g('s_mov_b32 s%d, 0x%x' % (d + 2, size))
    g('s_mov_b32 s%d, 0x20000' % (d + 3))

class Stamper:
    def __init__(self, g): self.g = g; self.n = 0
    def __call__(self, lvl=3, real=False):
        if real and lvl == 3: lvl = 7
        if (OPT['stamp'] & lvl) and self.n < 12:
            self.g('%s s[%d:%d]' % ('s_memrealtime' if (real or OPT.get('real')) else 's_memtime', sSTAMP + 2 * self.n, sSTAMP + 2 * self.n + 1))
            self.n += 1
    def dump(self, g, srdn, wgs, base, vt):
        if not OPT['stamp']: return
        g.waitall()
        g('s_lshl_b32 s%d, s%d, 2' % (sT0, wgs))
        g('s_add_u32 s%d, s%d, s%d' % (sT0, sT0, sW))
        g('s_lshl_b32 s%d, s%d, 6' % (sT0, sT0))
        g('s_add_u32 s%d, s%d, 0x%x' % (sT0, sT0, base))
        g('v_mov_b32 v%d, 0' % (vt + 1))
        for i in range(self.n):
            g('v_mov_b32 v%d, s%d' % (vt, sSTAMP + 2 * i))
            g('buffer_store_dword v%d, v%d, s[%d:%d], s%d offen offset:%d' % (vt, vt + 1, srdn, srdn + 3, sT0, 4 * i))
            g('s_nop 1')

def spread(gaps, items, lo, hi):
    n = hi - lo + 1
    m = len(items)
    for i, it in enumerate(items):
        gaps[lo + (i * n) // m].append(it)

def quota(gaps, items, lo, q):
    for i, it in enumerate(items):
        gaps[lo + i // q].append(it)

def MF(d, a, b, c): return 'v_mfma_f32_32x32x16_bf16 %s, %s, %s, %s' % (d, a, b, c)

def gen_k1():
    g = Gen(); st = Stamper(g)
    KN = NAME + '_kernel'
    g.label(KN)
    g('s_cmp_ge_u32 s2, 256')
    g('s_cbranch_scc1 L1_end')
    st(7); st(real=True)
    g('s_load_dwordx16 s[4:19], s[0:1], 0')
    g('s_load_dwordx8 s[20:27], s[0:1], 64')
    if OPT['tcode'] == 2:
        g('s_getpc_b64 s[74:75]')
        g.label('L1_pc')
        g('s_lshr_b32 s%d, s2, 3' % sT1)
        g('s_mul_i32 s%d, s%d, %d' % (sT2, sT1, 4 * CL * 128))
        g('v_min_u32 v253, %d, v0' % (4 * CL - 1))
        g('v_lshlrev_b32 v253, 7, v253')
        g('v_add_u32 v253, s%d, v253' % sT2)
        g('v_min_u32 v253, L1_last-L1_pc, v253')
        g('v_mov_b32 v25, s75')
        g('v_add_co_u32 v24, vcc, s74, v253')
        g('v_addc_co_u32 v25, vcc, 0, v25, vcc')
        g('global_load_dword v27, v[24:25], off')
    L, N, HH, R_, C_, GP, SW = 240, 241, 242, 243, 244, 245, 249
    t0, t1, t2, t3, t4 = 250, 251, 252, 253, 254
    XV = T[0:4]
    g('v_lshrrev_b32 v%d, 6, v0' % t0)
    g('v_and_b32 v%d, 63, v0' % L)
    g('v_readfirstlane_b32 s%d, v%d' % (sW, t0))
    HX = OPT['hx']; lhx = HX.bit_length() - 1
    ng = 16 // HX
    g('s_and_b32 s%d, s2, 7' % sT0)
    g('s_lshr_b32 s%d, s2, 3' % sT1)
    g('s_and_b32 s%d, s%d, %d' % (sT2, sT0, ng - 1))
    g('s_lshl_b32 s%d, s%d, %d' % (sH, sT2, lhx))
    g('s_and_b32 s%d, s%d, %d' % (sT2, sT1, HX - 1))
    g('s_add_u32 s%d, s%d, s%d' % (sH, sH, sT2))
    g('s_lshr_b32 s%d, s%d, %d' % (sT2, sT0, 4 - lhx))
    g('s_lshl_b32 s%d, s%d, %d' % (sRT, sT2, 5 - lhx))
    g('s_lshr_b32 s%d, s%d, %d' % (sT2, sT1, lhx))
    g('s_add_u32 s%d, s%d, s%d' % (sRT, sRT, sT2))
    g('s_lshr_b32 s%d, s%d, 1' % (sKVH, sH))
    g('s_lshl_b32 s%d, s%d, 13' % (sQB, sW))
    g('s_lshl_b32 s%d, s%d, 2' % (sT3, sRT))
    g('s_add_u32 s%d, s%d, s%d' % (sT3, sT3, sW))
    g('s_mul_i32 s%d, s%d, %d' % (sT4, sT3, 32 * 896))
    g('v_lshrrev_b32 v%d, 3, v%d' % (t0, L))
    g('v_and_b32 v%d, 7, v%d' % (t1, L))
    g('v_lshrrev_b32 v%d, 4, v%d' % (t2, L))
    g('v_xor_b32 v%d, v%d, v%d' % (t1, t1, t2))
    g('v_mul_u32_u24 v%d, 896, v%d' % (t0, t0))
    g('v_lshl_add_u32 v%d, v%d, 4, v%d' % (XV[0], t1, t0))
    g('v_xor_b32 v%d, 64, v%d' % (t1, XV[0]))
    g('v_add_u32 v%d, %d, v%d' % (XV[2], 2 * (7168 - 1024), XV[0]))
    g('v_add_u32 v%d, %d, v%d' % (XV[1], 7168 - 1024, t1))
    g('v_add_u32 v%d, %d, v%d' % (XV[3], 3 * (7168 - 1024), t1))
    if OPT['tcode'] == 1:
        g('s_getpc_b64 s[74:75]')
        g.label('L1_pc')
        g('s_lshl_b32 s%d, s%d, 2' % (sT2, sT1))
        g('s_add_u32 s%d, s%d, s%d' % (sT2, sT2, sW))
        g('s_mul_i32 s%d, s%d, %d' % (sT2, sT2, CL * 128))
        g('v_min_u32 v%d, %d, v%d' % (t3, CL - 1, L))
        g('v_lshlrev_b32 v%d, 7, v%d' % (t3, t3))
        g('v_add_u32 v%d, s%d, v%d' % (t3, sT2, t3))
        g('v_min_u32 v%d, L1_last-L1_pc, v%d' % (t3, t3))
        g('v_mov_b32 v25, s75')
        g('v_add_co_u32 v24, vcc, s74, v%d' % t3)
        g('v_addc_co_u32 v25, vcc, 0, v25, vcc')
        g('global_load_dword v27, v[24:25], off')
    st(2)
    g('s_waitcnt lgkmcnt(0)')
    st(2)
    srd(g, SX, 4, 2048 * 896)
    if OPT['tx']:
        g('v_lshrrev_b32 v%d, 1, v%d' % (t0, L))
        g('v_mul_u32_u24 v%d, 896, v%d' % (t0, t0))
        g('v_and_b32 v%d, 1, v%d' % (t1, L))
        g('v_lshl_add_u32 v%d, v%d, 7, v%d' % (t0, t1, t0))
        for i in range(OPT['tx']):
            g('s_nop 0'); g.raw('    buffer_load_dword v26, v%d, s[%d:%d], s%d offen offset:%d' % (t0, SX, SX + 3, sT4, 640 - 256 * i)); g.pos += 1; g.vm.append((None, {'v26'}, False))
    g('s_cmp_eq_u32 s%d, 2' % sW)
    g('s_cselect_b32 s%d, s16, s18' % S1)
    g('s_cselect_b32 s%d, s17, s19' % (S1 + 1))
    g('s_and_b32 s%d, s%d, 1' % (sT0, sH))
    g('s_mul_i32 s%d, s%d, 448' % (sTC, sKVH))
    g('s_and_b32 s%d, s%d, 0xffffff80' % (sTC, sTC))
    g('s_lshl_b32 s%d, s%d, 9' % (sT1, sH))
    g('s_mov_b32 s%d, 0x%x' % (S1 + 2, 448 * 3584))
    g('s_mov_b32 s%d, 3584' % sTS)
    g('s_cmp_lt_u32 s%d, 2' % sW)
    g('s_cselect_b32 s%d, s10, s%d' % (S1, S1))
    g('s_cselect_b32 s%d, s11, s%d' % (S1 + 1, S1 + 1))
    g('s_cselect_b32 s%d, 0x%x, s%d' % (S1 + 2, 448 * 8192, S1 + 2))
    g('s_cselect_b32 s%d, 8192, s%d' % (sTS, sTS))
    g('s_cselect_b32 s%d, s%d, s%d' % (sTC, sT1, sTC))
    g('s_cselect_b32 s%d, s%d, s%d' % (sT0, sW, sT0))
    g('s_and_b32 s%d, s%d, 0xffff' % (S1 + 1, S1 + 1))
    g('s_mov_b32 s%d, 0x20000' % (S1 + 3))
    F = HX // 2
    g('s_and_b32 s%d, s%d, %d' % (sRL, sRT, 16 // F - 1))
    g('s_lshl_b32 s%d, s%d, 1' % (sTI, sRL))
    g('s_add_u32 s%d, s%d, s%d' % (sTI, sTI, sT0))
    def wtouch(row0, nrow):
        nrow *= F
        if nrow > 16:
            a_ = nrow // F // 2
            wtouch(row0, a_); wtouch(row0 + 32 * a_, nrow // F - a_)
            return
        g('s_mul_i32 s%d, s%d, %d' % (sT0, sTI, nrow))
        g('s_add_u32 s%d, s%d, %d' % (sT0, sT0, row0))
        g('v_min_u32 v%d, %d, v%d' % (t0, 4 * nrow - 1, L))
        g('v_lshrrev_b32 v%d, 2, v%d' % (t1, t0))
        g('v_add_u32 v%d, s%d, v%d' % (t1, sT0, t1))
        g('v_mul_u32_u24 v%d, s%d, v%d' % (t1, sTS, t1))
        g('v_and_b32 v%d, 3, v%d' % (t0, t0))
        g('v_lshl_add_u32 v%d, v%d, 7, v%d' % (t0, t0, t1))
        g('s_nop 0'); g.raw('    buffer_load_dword v26, v%d, s[%d:%d], s%d offen' % (t0, S1, S1 + 3, sTC)); g.pos += 1; g.vm.append((None, {'v26'}, False))
    if OPT['tw0']: wtouch(0, OPT['tw0'])
    pre = []
    P = pre.append
    P('v_and_b32 v%d, 31, v%d' % (N, L))
    P('v_lshrrev_b32 v%d, 5, v%d' % (HH, L))
    P('v_bfe_u32 v%d, v%d, 2, 2' % (R_, L))
    P('v_and_b32 v%d, 3, v%d' % (C_, L))
    P('v_bfe_u32 v%d, v%d, 4, 1' % (GP, L))
    P('v_lshrrev_b32 v%d, 1, v%d' % (t0, C_))
    P('v_and_b32 v%d, 1, v%d' % (t1, C_))
    P('v_lshl_or_b32 v%d, v%d, 1, v%d' % (SW, t1, t0))
    P('v_lshl_add_u32 v%d, v%d, 3, v%d' % (t2, HH, R_))
    P('v_lshlrev_b32 v%d, 9, v%d' % (t3, t2))
    P('v_lshl_add_u32 v%d, v%d, 5, v%d' % (t3, GP, t3))
    P('v_lshl_add_u32 v%d, v%d, 3, v%d' % (t3, SW, t3))
    for i in range(4):
        P('v_xor_b32 v%d, %d, v%d' % (t4, i, R_))
        P('v_lshl_add_u32 v%d, v%d, 6, v%d' % (VB[0][i], t4, t3))
        P('v_add_u32 v%d, 0x10000, v%d' % (VB[1][i], VB[0][i]))
        P('v_add_u32 v%d, 0x20000, v%d' % (VB[2][i], VB[0][i]))
    P('v_mul_u32_u24 v%d, 224, v%d' % (t3, t2))
    P('v_mul_u32_u24 v%d, 8320, v%d' % (t4, GP))
    P('v_add_u32 v%d, v%d, v%d' % (t3, t3, t4))
    P('v_lshl_add_u32 v%d, v%d, 3, v%d' % (VG[0], SW, t3))
    P('v_add_u32 v%d, 0x10000, v%d' % (VG[1], VG[0]))
    P('v_add_u32 v%d, 0x20000, v%d' % (VG[2], VG[0]))
    P('v_lshl_add_u32 v%d, v%d, 1, v%d' % (t0, GP, t0))
    P('v_lshl_add_u32 v%d, v%d, 2, v%d' % (t0, t1, t0))
    P('v_lshlrev_b32 v%d, 3, v%d' % (t0, t0))
    P('v_lshl_add_u32 v%d, v%d, 7, v%d' % (t0, t2, t0))
    P('v_lshrrev_b32 v%d, 1, v%d' % (t1, R_))
    for i in range(2):
        P('v_xor_b32 v%d, %d, v%d' % (t4, i, t1))
        P('v_lshl_add_u32 v%d, v%d, 6, v%d' % (OB[0][i], t4, t0))
        P('v_add_u32 v%d, 0x10000, v%d' % (OB[1][i], OB[0][i]))
        P('v_add_u32 v%d, 0x20000, v%d' % (OB[2][i], OB[0][i]))
    P('v_and_b32 v%d, 0x13, v%d' % (t0, N))
    P('v_bfe_u32 v%d, v%d, 2, 1' % (t1, N))
    P('v_lshl_or_b32 v%d, v%d, 3, v%d' % (t0, t1, t0))
    P('v_bfe_u32 v%d, v%d, 3, 1' % (t1, N))
    P('v_lshl_or_b32 v%d, v%d, 2, v%d' % (t0, t1, t0))
    P('v_and_b32 v%d, 15, v%d' % (t1, t0))
    P('v_xor_b32 v%d, v%d, v%d' % (t1, t1, HH))
    P('v_lshlrev_b32 v%d, 9, v%d' % (t0, t0))
    for i in range(8):
        P('v_xor_b32 v%d, %d, v%d' % (t4, 2 * i, t1))
        P('v_lshl_add_u32 v%d, v%d, 4, v%d' % (KB[0][i], t4, t0))
        P('v_add_u32 v%d, 0x10000, v%d' % (KB[1][i], KB[0][i]))
        P('v_add_u32 v%d, 0x20000, v%d' % (KB[2][i], KB[0][i]))
    P('v_lshlrev_b32 v%d, 4, v%d' % (VL16, L))
    P('v_mov_b32 v%d, 0' % VL)
    XR = [[NEGM + 4 * s + i for i in range(4)] for s in range(2)]
    P('v_bfe_u32 v%d, v%d, 1, 3' % (t0, N))
    P('v_xor_b32 v%d, v%d, v%d' % (t0, t0, HH))
    P('v_lshlrev_b32 v%d, 7, v%d' % (t1, N))
    P('v_add_u32 v%d, s%d, v%d' % (t1, sQB, t1))
    P('v_add_u32 v%d, 0x8000, v%d' % (t1, t1))
    for i in range(4):
        P('v_xor_b32 v%d, %d, v%d' % (t4, 2 * i, t0))
        P('v_lshl_add_u32 v%d, v%d, 4, v%d' % (XR[0][i], t4, t1))
        P('v_add_u32 v%d, 0x10000, v%d' % (XR[1][i], XR[0][i]))
    P('v_and_b32 v%d, 7, v%d' % (t0, L))
    P('v_lshlrev_b32 v%d, 2, v%d' % (t1, GP))
    P('v_xor_b32 v%d, v%d, v%d' % (t0, t0, t1))
    P('v_lshlrev_b32 v%d, 4, v%d' % (t0, t0))
    P('v_lshrrev_b32 v%d, 3, v%d' % (t1, L))
    P('v_mul_u32_u24 v%d, 896, v%d' % (t1, t1))
    P('v_add_u32 v%d, v%d, v%d' % (t0, t0, t1))
    P('s_mul_i32 s%d, s%d, %d' % (sOWO, sH, 256 * 896))
    P('s_mul_i32 s%d, s%d, %d' % (sT2, sW, 64 * 896))
    P('s_add_u32 s%d, s%d, s%d' % (sOWO, sOWO, sT2))
    for i in range(8):
        P('v_add_u32 v%d, %d, v%d' % (DV3[i], 8 * i * 896 - 1024 * (i & 3), t0))
    for i in range(4): P('v_mov_b32 v%d, 0' % T[4 + i])
    XA = OPT['xa']
    npre = (len(pre) + 4 * XA - 1) // (4 * XA)
    def xdma(cb):
        g('s_add_u32 m0, s%d, %d' % (sQB, (cb // 2 + 1) * 32768 + (cb & 1) * 4096))
        for gi in range(4):
            g('buffer_load_dwordx4 v%d, s[%d:%d], s%d offen offset:%d lds' % (XV[gi], SX, SX + 3, sT4, 1024 * gi), tag=('x', cb))
            for s in pre[:npre]: g(s)
            del pre[:npre]
        g('s_add_u32 s%d, s%d, 128' % (sT4, sT4))
    for cb in range(XA): xdma(cb)
    assert not pre
    st(2)
    g('s_cmp_lt_u32 s%d, 2' % sW)
    g('s_cbranch_scc0 L1_w23')
    g.fence()
    srd(g, SKV, 6, 8 * 2048 * 512)
    g('s_mov_b32 s%d, %d' % (sST1, 32 * 8192))
    g('s_lshl_b32 s%d, s%d, 20' % (sOKV, sKVH))
    if OPT['oobk'] & 1: g('s_add_u32 s%d, s%d, %d' % (SKV + 2, sOKV, 2048 * 512))
    g('s_add_u32 s%d, s%d, %d' % (sOKV, sOKV, 1536 * 512))
    g('s_lshl_b32 s%d, s%d, 9' % (sO1, sH))
    g('s_lshl_b32 s%d, s%d, 4' % (sT2, sW))
    g('v_add_u32 v%d, s%d, v%d' % (t0, sT2, HH))
    for par in range(2):
        g('v_add_u32 v%d, %d, v%d' % (t1, 2 * par, HH))
        g('v_lshlrev_b32 v%d, 2, v%d' % (t1, t1))
        g('v_xor_b32 v%d, v%d, v%d' % (t1, t1, N))
        g('v_lshlrev_b32 v%d, 4, v%d' % (t1, t1))
        g('v_lshl_add_u32 v%d, v%d, 13, v%d' % (t1, t0, t1))
        for i in range(par, 8, 2):
            g('v_add_u32 v%d, %d, v%d' % (DV1[i], 2 * i * 8192 - 1024 * (i & 3), t1))
    g('v_xor_b32 v%d, v%d, v%d' % (t2, HH, N))
    g('v_lshlrev_b32 v%d, 9, v%d' % (t0, t0))
    for i in range(8):
        g('v_xor_b32 v%d, %d, v%d' % (t1, 2 * i, t2))
        g('v_lshl_add_u32 v%d, v%d, 4, v%d' % (t1, t1, t0))
        g('v_add_u32 v%d, %d, v%d' % (DV2[i], 1024 * i - 1024 * (i & 3), t1))
    g('s_branch L1_wj')
    g.label('L1_w23')
    g.fence()
    g('s_cmp_eq_u32 s%d, 2' % sW)
    g('s_cselect_b32 s%d, 0, 8' % sT0)
    srd(g, SKV, 8, 8 * 2048 * 512)
    g('s_mov_b32 s%d, %d' % (sST1, 32 * 3584))
    g('s_lshl_b32 s%d, s%d, 20' % (sOKV, sKVH))
    g('s_add_u32 s%d, s%d, %d' % (sOKV, sOKV, 1536 * 512 - 16384))
    g('s_mul_i32 s%d, s%d, 224' % (sO1, sH))
    g('s_and_b32 s%d, s%d, 1' % (sT2, sW))
    g('s_lshl_b32 s%d, s%d, 4' % (sT2, sT2))
    g('s_mov_b32 s%d, 4682' % sIDX)
    g('v_mov_b32 v%d, 0x%x' % (t4, OOB))
    g('v_subrev_u32 v%d, s%d, v%d' % (t3, sT0, L))
    for i in range(8):
        g('v_add_u32 v%d, %d, v%d' % (t0, 64 * i, t3))
        g('v_cmp_gt_u32 vcc, 448, v%d' % t0)
        g('v_mul_u32_u24 v%d, s%d, v%d' % (t1, sIDX, t0))
        g('v_lshrrev_b32 v%d, 16, v%d' % (t1, t1))
        g('v_mul_u32_u24 v%d, %d, v%d' % (t1, 3584 - 224, t1))
        g('v_lshl_add_u32 v%d, v%d, 4, v%d' % (t1, t0, t1))
        g('v_subrev_u32 v%d, %d, v%d' % (t1, 1024 * (i & 3), t1))
        g('v_cndmask_b32 v%d, v%d, v%d, vcc' % (DV1[i], t4, t1))
    g('v_add_u32 v%d, s%d, v%d' % (t0, sT2, HH))
    for par in range(2):
        g('v_add_u32 v%d, %d, v%d' % (t1, 2 * par, HH))
        g('v_lshlrev_b32 v%d, 2, v%d' % (t1, t1))
        g('v_xor_b32 v%d, v%d, v%d' % (t1, t1, N))
        g('v_lshlrev_b32 v%d, 4, v%d' % (t1, t1))
        g('v_lshl_add_u32 v%d, v%d, 9, v%d' % (t1, t0, t1))
        for i in range(par, 8, 2):
            g('v_add_u32 v%d, %d, v%d' % (DV2[i], 1024 * i - 1024 * (i & 3), t1))
    g.label('L1_wj')
    g.fence()
    g('s_nop 1')

    def dma_items(stage):
        if stage < 14: dv, s, so, adv = DV1, S1, sO1, 's_add_u32 s%d, s%d, s%d' % (sO1, sO1, sST1)
        elif stage < 18: dv, s, so, adv = DV3, SWD, sOWD, ('s_add_u32 s%d, s%d, 256' % (sOWD, sOWD) if stage != 16 else 's_add_u32 s%d, s%d, s%d' % (sOWD, sOWD, sAD3))
        elif stage < 35: dv, s, so, adv = DV2, SKV, sOKV, 's_add_u32 s%d, s%d, 0x4000' % (sOKV, sOKV)
        else: dv, s, so, adv = DV3, SWO, sOWO, ['s_add_u32 s%d, s%d, 128' % (sOWO, sOWO), 's_cmp_eq_u32 s%d, s%d' % (sOWO, sWOE),
                                                's_cselect_b32 s%d, 896, 0' % sT2, 's_sub_u32 s%d, s%d, s%d' % (sOWO, sOWO, sT2)]
        items = []
        for i in range(8):
            def f(i=i):
                if stage == 18 and i == 0 and OPT['oobk'] & 2:
                    g('s_mov_b32 s75, s%d' % (SKV + 2)); g('s_cmp_lt_u32 s%d, 2' % sW); g('s_cselect_b32 s%d, s75, 0' % (SKV + 2))
                g('buffer_load_dwordx4 v%d, s[%d:%d], s%d offen offset:%d%s lds' % (dv[i], s, s + 3, so, 1024 * (i & 3), DFL), tag=('st', stage))
                if stage == 18 and i == 7 and OPT['oobk'] & 2: g('s_mov_b32 s%d, s75' % (SKV + 2))
                if i == 7:
                    for a_ in ([adv] if isinstance(adv, str) else adv): g(a_)
            def m(i=i):
                g('s_add_u32 m0, s%d, %d' % (sQB, (stage % 5) * 32768 + 1024 * i))
            items.append((m if i % 4 == 0 else None, f))
        return items
    def dma_now(stage):
        for m, f in dma_items(stage):
            if m: m()
            f()
    st(2)
    srd(g, SWO, 12, 4096 * 896)
    srd(g, SWD, 20, 1792 * 896)
    srd(g, SWS, 26, WS_SIZE)
    srd(g, SDBG, 24, 256)
    srd(g, SOUT, 22, 2048 * 896)
    g('s_or_b32 s%d, s2, s%d' % (sT0, sW))
    g('s_cmp_lg_u32 s%d, 0' % sT0)
    g('s_cbranch_scc1 L1_non')
    g.raw('    s_memrealtime s[74:75]')
    g.raw('    v_mov_b32 v%d, 0' % t1)
    g.raw('    s_waitcnt lgkmcnt(0)')
    g.raw('    s_or_b32 s74, s74, 1')
    g.raw('    v_mov_b32 v%d, s74' % t0)
    g.raw('    buffer_store_dword v%d, v%d, s[%d:%d], 0 offen sc1' % (t0, t1, SDBG, SDBG + 3))
    g.label('L1_non')
    g.vm.append(('non', set(), True))
    g.vm.pop()
    g('s_mov_b32 s%d, 0x3f803f80' % sONE)
    g('s_mov_b32 s%d, 0xffff0000' % sMASK)
    g('s_mov_b32 s%d, %s' % (sTHR, f2h(TTHR)))
    g('s_lshl_b32 s%d, s%d, 6' % (sSP, sH))
    g('s_add_u32 s%d, s%d, s%d' % (sSP, sSP, sT3))
    g('s_mul_i32 s%d, s%d, 28672' % (sSP, sSP))
    if SP_BASE: g('s_add_u32 s%d, s%d, 0x%x' % (sSP, sSP, SP_BASE))
    g('s_add_u32 s%d, s%d, 28672' % (sSPE, sSP))
    g('s_add_u32 s%d, s%d, 0x%x' % (sYP, sSP, YP_OFF))
    g('s_add_u32 s%d, s%d, 896' % (sWOE, sOWO))
    g('s_mul_i32 s%d, s%d, 37' % (sT0, sH))
    g('s_lshr_b32 s%d, s%d, 8' % (sT0, sT0))
    g('s_mul_i32 s%d, s%d, 7' % (sT0, sT0))
    g('s_sub_u32 s%d, s%d, s%d' % (sT0, sH, sT0))
    g('s_lshl_b32 s%d, s%d, 7' % (sT1, sT0))
    g('s_add_u32 s%d, s%d, s%d' % (sOWO, sOWO, sT1))
    g('s_lshl_b32 s%d, s%d, 12' % (sT1, sT0))
    g('s_add_u32 s%d, s%d, s%d' % (sSP, sSP, sT1))
    g('s_mul_i32 s%d, s%d, %d' % (sOWD, sH, 112 * 896))
    if OPT['oobk'] & 4: g('s_add_u32 s%d, s%d, %d' % (SWD + 2, sOWD, 112 * 896))
    g('s_and_b32 s%d, s%d, 1' % (sT1, sW))
    g('s_mul_i32 s%d, s%d, %d' % (sT1, sT1, 64 * 896))
    g('s_add_u32 s%d, s%d, s%d' % (sOWD, sOWD, sT1))
    g('s_lshr_b32 s%d, s%d, 1' % (sT1, sW))
    g('s_lshl_b32 s%d, s%d, 29' % (sAD3, sT1))
    g('s_add_u32 s%d, s%d, 256' % (sAD3, sAD3))
    g('s_lshl_b32 s%d, s%d, 7' % (sT1, sT1))
    g('s_add_u32 s%d, s%d, s%d' % (sOWD, sOWD, sT1))
    g('s_lshl_b32 s%d, s%d, 4' % (sFP, sT3))
    g('s_add_u32 s%d, s%d, s%d' % (sFP, sFP, sH))
    g('s_mul_i32 s%d, s%d, %d' % (sFP, sFP, FST))
    g('s_add_u32 s%d, s%d, 0x%x' % (sFP, sFP, FL_BASE))
    g('s_lshr_b32 s%d, s2, 3' % sI)
    g('s_sub_i32 s%d, s%d, 4' % (sCT, sI))
    g('s_max_i32 s%d, s%d, 0' % (sCT, sCT))
    g('s_mul_i32 s%d, s%d, 4682' % (sT0, sCT))
    g('s_lshr_b32 s%d, s%d, 16' % (sT0, sT0))
    g('s_mul_i32 s%d, s%d, 14' % (sT1, sT0))
    g('s_sub_u32 s%d, s%d, s%d' % (sCT, sCT, sT1))
    g('s_and_b32 s%d, s%d, 1' % (sT0, sT0))
    g('s_and_b32 s%d, s2, 7' % sT1)
    g('s_lshl_b32 s%d, s%d, 1' % (sT1, sT1))
    g('s_add_u32 s%d, s%d, s%d' % (sT0, sT0, sT1))
    g('s_lshl_b32 s%d, s%d, 2' % (sRO, sT0))
    g('s_add_u32 s%d, s%d, s%d' % (sRO, sRO, sW))
    g('s_mul_i32 s%d, s%d, %d' % (sFC, sRO, 16 * FST))
    g('s_add_u32 s%d, s%d, 0x%x' % (sFC, sFC, FL_BASE))
    g('s_mul_i32 s%d, s%d, 14' % (sPB, sRO))
    g('s_add_u32 s%d, s%d, s%d' % (sPB, sPB, sCT))
    g('s_lshl_b32 s%d, s%d, 11' % (sPB, sPB))
    if SP_BASE: g('s_add_u32 s%d, s%d, 0x%x' % (sPB, sPB, SP_BASE))
    g('s_mov_b32 s%d, 0xffff' % sPEND)
    g('s_mov_b32 s%d, 0' % sSPIN)
    g('s_mul_i32 s%d, s%d, %d' % (sXO, sRO, 32 * 896))
    g('s_lshl_b32 s%d, s%d, 6' % (sT0, sCT))
    g('s_add_u32 s%d, s%d, s%d' % (sXO, sXO, sT0))
    g('s_add_u32 s%d, s%d, 0x%x' % (sYB, sPB, YP_OFF))
    st(2)
    A0, A1, A2, A3 = T[4:8]
    def xread(cb):
        g.wait_tag(('x', cb), False)
        o = (cb // 2) * 32768 + (cb & 1) * 4096
        for tt in range(4):
            g('ds_read_b128 %s, v%d offset:%d' % (vr(X + 16 * cb + 4 * tt, 4), XR[o >> 16][tt], o & 0xffff))
    def stats(cb):
        for d in range(16):
            r = X + 16 * cb + d
            g('v_dot2c_f32_bf16 v%d, s%d, v%d' % ((A0, A1)[d & 1], sONE, r))
            g('v_dot2c_f32_bf16 v%d, v%d, v%d' % ((A2, A3)[d & 1], r, r))
    nx = XA; nd = 0
    def ptl():
        g('v_min_u32 v24, 48, v%d' % VL16); g('v_lshlrev_b32 v24, 12, v24')
        g('buffer_load_dword v25, v24, s[%d:%d], s%d offen' % (SKV, SKV + 3, sOKV))
        g('s_mul_i32 s%d, s%d, %d' % (sT0, sH, 112 * 896))
        g('s_nop 0'); g.raw('    buffer_load_dword v25, v24, s[%d:%d], s%d offen' % (SWD, SWD + 3, sT0)); g.pos += 1; g.vm.append((None, {'v25'}, False))
        g('s_mul_i32 s%d, s%d, %d' % (sT0, sH, 256 * 896))
        g('s_nop 0'); g.raw('    buffer_load_dword v25, v24, s[%d:%d], s%d offen' % (SWO, SWO + 3, sT0)); g.pos += 1; g.vm.append((None, {'v25'}, False))
    if OPT.get('ptl') == 1: ptl()
    def more(done):
        nonlocal nx, nd
        if nx < 7: xdma(nx); nx += 1
        if nx == 7:
            while nd < OPT['ndp'] and 2 * nd <= done:
                dma_now(nd); nd += 1
                if OPT.get('ptl', 0) == nd + 1: ptl()
    more(0)
    xread(0)
    for cb in range(7):
        if cb < 6: more(cb)
        if cb < 6: xread(cb + 1)
        if cb == 0: st(2)
        if cb == 6: more(6); st(2)
        stats(cb)
    assert nx == 7 and nd == OPT['ndp']
    g('v_add_f32 v%d, v%d, v%d' % (A0, A0, A1))
    g('v_add_f32 v%d, v%d, v%d' % (A2, A2, A3))
    g('v_mov_b32 v%d, v%d' % (A1, A0))
    g('v_mov_b32 v%d, v%d' % (A3, A2))
    g('v_permlane32_swap_b32 v%d, v%d' % (A0, A1))
    g('v_permlane32_swap_b32 v%d, v%d' % (A2, A3))
    g('v_add_f32 v%d, v%d, v%d' % (A0, A0, A1))
    g('v_add_f32 v%d, v%d, v%d' % (A2, A2, A3))
    g('v_mul_f32 v%d, %s, v%d' % (A0, f2h(1.0 / 448), A0))
    g('v_mul_f32 v%d, %s, v%d' % (A2, f2h(1.0 / 448), A2))
    g('v_fma_f32 v%d, -v%d, v%d, v%d' % (A2, A0, A0, A2))
    g('v_max_f32 v%d, 0, v%d' % (A2, A2))
    g('v_add_f32 v%d, %s, v%d' % (A2, f2h(1e-5), A2))
    g('v_rsq_f32 v%d, v%d' % (A2, A2))
    g('v_mul_f32 v%d, %s, v%d' % (VA, f2h(CS), A2))
    g('v_mul_f32 v%d, -v%d, v%d' % (VBB, A0, VA))

    def norm_items(t):
        its = []
        for d in range(4):
            r = X + 4 * t + d
            a, b = T[2 * (d & 1)], T[2 * (d & 1) + 1]
            its += ['v_lshlrev_b32 v%d, 16, v%d' % (a, r),
                    'v_and_b32 v%d, s%d, v%d' % (b, sMASK, r),
                    'v_fma_f32 v%d, v%d, v%d, v%d' % (a, a, VA, VBB),
                    'v_fma_f32 v%d, v%d, v%d, v%d' % (b, b, VA, VBB),
                    'v_cvt_pk_bf16_f32 v%d, v%d, v%d' % (r, a, b)]
        return its
    g.wait_tag(('st', 0), False)
    g('s_barrier')
    st(3)

    M = []
    def tr(base, off): return [('ds_read_b64_tr_b16', 0, base, off[0]), ('ds_read_b64_tr_b16', 2, base, off[1])]
    idx = {}
    for s in range(14):
        bs, so = slot_off(s)
        for tt in range(2):
            t = 2 * s + tt
            idx[('p1', t)] = len(M)
            mq = []; mg = []
            for n in range(8):
                o = so + tt * 8192 + (n >> 2) * 256
                mq.append((s, tr(VB[bs][n & 3], (o, o + 2048)),
                          lambda af, n=n, t=t: MF(ar(16 * n, 16), vr(af, 4), vr(X + 4 * t, 4), ar(16 * n, 16) if t else '0')))
            for n in range(7):
                o = so + 16384 + 16 * tt * 224 + 32 * n
                mg.append((s, tr(VG[bs], (o, o + 4 * 224)),
                          lambda af, n=n, t=t: MF(ar(128 + 16 * n, 16), vr(af, 4), vr(X + 4 * t, 4), ar(128 + 16 * n, 16) if t else '0')))
            M += (mg + mq) if t == 27 else (mq + mg)
    kyp = len(M); idx['yp'] = kyp
    order = [(ct, ks) for ks in range(7) for ct in range(3)] + [(ct, ks) for ct in range(3, 14) for ks in range(7)]
    yfirst = {}; ylast = {}; hfirst = {}
    for ct, ks in order:
        s = 14 + ct // 4; bs, so = slot_off(s)
        o = so + ((ct >> 1) & 1) * 16384 + ks * 2048
        acc = YB[ct & 3]
        yfirst.setdefault(ct, len(M)); ylast[ct] = len(M); hfirst.setdefault(ks, len(M))
        M.append((s, tr(OB[bs][ct & 1], (o, o + 512)),
                  lambda af, acc=acc, ks=ks: MF(vr(acc, 16), vr(af, 4), vr(HF[ks], 4), vr(acc, 16) if ks else '0')))
    A0S = 18
    def add_qk(j):
        s = A0S + j; bs, so = slot_off(s); S = SB[j & 1]
        idx[('qk', j)] = len(M)
        for t in range(16):
            c = vr(S, 16) if t else ('0' if j < 2 else vr(NEGM, 16))
            M.append((s, [('ds_read_b128', 0, KB[bs][t & 7], so + (t >> 3) * 256)],
                      lambda af, t=t, S=S, c=c: MF(vr(S, 16), vr(af, 4), vr(Q + 4 * t, 4), c)))
    def add_pv(j):
        s = A0S + 1 + j; bs, so = slot_off(s)
        idx[('pv', j)] = len(M)
        for tt in range(2):
            for n in range(8):
                o = so + 16384 + tt * 8192 + (n >> 2) * 256
                c = '0' if (j == 0 and tt == 0) else ar(16 * n, 16)
                M.append((s, tr(VB[bs][n & 3], (o, o + 2048)),
                          lambda af, n=n, tt=tt, c=c: MF(ar(16 * n, 16), vr(af, 4), vr(PB[tt], 4), c)))
    add_qk(0)
    for j in range(15):
        add_qk(j + 1); add_pv(j)
    add_pv(15)
    for u in range(7):
        s = 35 + u; bs, so = slot_off(s)
        idx[('op', u)] = len(M)
        for t in range(16):
            for n in range(2):
                o = so + t * 2048
                acc = SACC[u & 1] + 16 * n
                M.append((s, tr(OB[bs][n], (o, o + 512)),
                          lambda af, acc=acc, t=t: MF(vr(acc, 16), vr(af, 4), vr(OF + 4 * t, 4), vr(acc, 16) if t else '0')))
    kt = len(M); o0 = idx[('op', 0)]
    def yq(i): return 128 + (64 + 4 * i) % 128
    for i in range(32):
        M.append((41, [], lambda af, i=i: MF(vr(YACC, 16), vr(IA[i & 1], 4), ar(yq(i), 4), vr(YACC, 16) if i else '0')))
    for i in range(32):
        M.append((41, [], lambda af, i=i: MF(vr(SA, 16), vr(IA[i & 1], 4), ar(4 * i, 4), vr(SA, 16) if i else '0')))
    NM = len(M)
    gaps = [[] for _ in range(NM + 1)]
    first = {}; last = {}
    for k, m in enumerate(M):
        first.setdefault(m[0], k); last[m[0]] = k
    bar_at = {}
    for s in range(NST - 1):
        bar_at[last[s] + 1 - OPT['barpos']] = s
    for t in range(27):
        k0 = idx[('p1', t)]
        spread(gaps, norm_items(t + 1), k0, k0 + 13)
    TA_, TB_, TD_ = 24, 25, 26
    def touch(n, srdn, so, flags=''):
        return ['v_min_u32 v%d, %d, v%d' % (TA_, (n - 1) * 16, VL16),
                'v_lshl_add_u32 v%d, v%d, 3, v%d' % (TA_, TA_, TB_),
                ('raw', 'buffer_load_dword v%d, v%d, s[%d:%d], %s offen%s' % (TD_, TA_, srdn, srdn + 3, so, flags))]
    if OPT['tw1']: gaps[OPT['tw1']] += [('call', lambda: wtouch(32 * OPT['tw0'], 14 - OPT['tw0']))]
    if OPT['twd'] >= 0:
        gaps[idx[('p1', OPT['twd'])] + 3] += ['s_lshl_b32 s%d, s%d, 2' % (sT0, sRL), 's_add_u32 s%d, s%d, s%d' % (sT0, sT0, sW), 's_mul_i32 s%d, s%d, %d' % (sT0, sT0, 1568 * F),
                     's_mul_i32 s%d, s%d, %d' % (sT1, sH, 112 * 896), 's_add_u32 s%d, s%d, s%d' % (sT0, sT0, sT1),
                     'v_mov_b32 v%d, 0' % TB_] + touch(13 * F, SWD, 's%d' % sT0)
    if OPT['tkv'] >= 0:
        gaps[idx[('p1', OPT['tkv'])] + 3] += ['s_lshl_b32 s%d, s%d, 1' % (sT0, sRL), 's_and_b32 s%d, s%d, 1' % (sT1, sH), 's_add_u32 s%d, s%d, s%d' % (sT0, sT0, sT1),
                     's_lshl_b32 s%d, s%d, 1' % (sT0, sT0), 's_and_b32 s%d, s%d, 1' % (sT1, sW), 's_add_u32 s%d, s%d, s%d' % (sT0, sT0, sT1),
                     's_mul_i32 s%d, s%d, %d' % (sT0, sT0, 4096 * F), 's_lshl_b32 s%d, s%d, 20' % (sT1, sKVH), 's_add_u32 s%d, s%d, s%d' % (sT0, sT0, sT1),
                     'v_mov_b32 v%d, 0x%x' % (TB_, 1536 * 512)] + touch(32 * F, SKV, 's%d' % sT0)
    if OPT['two'] >= 0:
        gaps[idx[('qk', OPT['two'])] + 3] += ['s_lshl_b32 s%d, s%d, 2' % (sT0, sRL), 's_add_u32 s%d, s%d, s%d' % (sT0, sT0, sW), 's_mul_i32 s%d, s%d, %d' % (sT0, sT0, 3584 * F),
                     's_mul_i32 s%d, s%d, %d' % (sT1, sH, 256 * 896), 's_add_u32 s%d, s%d, s%d' % (sT0, sT0, sT1),
                     'v_mov_b32 v%d, 0' % TB_] + touch(28 * F, SWO, 's%d' % sT0)
    if OPT.get('tsp', -1) >= 0:
        gaps[idx[('qk', OPT['tsp'])] + 3] += ['v_and_b32 v%d, 0xf0, v%d' % (TA_, VL16), 'v_mul_u32_u24 v%d, %d, v%d' % (TA_, HS // 16, TA_),
                     ('raw', 'buffer_load_dword v%d, v%d, s[%d:%d], s%d offen sc1' % (TD_, TA_, SWS, SWS + 3, sPB))]
    if OPT.get('typ', -1) >= 0:
        gaps[idx[('p1', OPT['typ'])] + 3] += ['v_and_b32 v%d, 0xf0, v%d' % (TA_, VL16), 'v_mul_u32_u24 v%d, %d, v%d' % (TA_, HS // 16, TA_),
                     ('raw', 'buffer_load_dword v%d, v%d, s[%d:%d], s%d offen sc1' % (TD_, TA_, SWS, SWS + 3, sYB))]
    if OPT.get('ttlb', -1) >= 0:
        ld = lambda srdn, so: ('raw', 'buffer_load_dword v%d, v%d, s[%d:%d], s%d offen' % (TD_, TA_, srdn, srdn + 3, so))
        m_ = OPT.get('ttm', 7)
        gaps[OPT['ttlb']] += ['v_lshlrev_b32 v%d, 8, v%d' % (TA_, VL16)] + ([ld(SKV, sOKV)] if m_ & 1 else []) + \
                     (['s_mul_i32 s%d, s%d, %d' % (sT0, sH, 112 * 896), ld(SWD, sT0)] if m_ & 2 else []) + \
                     (['v_min_u32 v%d, %d, v%d' % (TA_, 55 * 4096, TA_), 's_mul_i32 s%d, s%d, %d' % (sT0, sH, 256 * 896), ld(SWO, sT0)] if m_ & 4 else [])
    if OPT.get('tc2', -1) >= 0:
        gaps[idx[('qk', OPT['tc2'])] + 5] += ['s_getpc_b64 s[74:75]', ('label', 'L1_pc2'), 's_lshr_b32 s%d, s2, 3' % sT0, 's_lshl_b32 s%d, s%d, 2' % (sT0, sT0),
                     's_add_u32 s%d, s%d, s%d' % (sT0, sT0, sW), 's_lshl_b32 s%d, s%d, 9' % (sT0, sT0),
                     'v_min_u32 v%d, 48, v%d' % (TA_, VL16), 'v_lshlrev_b32 v%d, 3, v%d' % (TA_, TA_), 'v_add_u32 v%d, s%d, v%d' % (TA_, sT0, TA_),
                     'v_min_u32 v%d, L1_last-L1_pc2, v%d' % (TA_, TA_), 'v_mov_b32 v%d, s75' % TB_, 'v_add_co_u32 v%d, vcc, s74, v%d' % (TA_, TA_),
                     'v_addc_co_u32 v%d, vcc, 0, v%d, vcc' % (TB_, TB_), ('raw', 'global_load_dword v%d, v[%d:%d], off' % (TD_, TA_, TB_))]
    def conv_items(dst, t, tmp):
        its = []
        base = 16 * (t >> 1) + 8 * (t & 1)
        for d in range(4):
            a, b = tmp[2 * (d & 1)], tmp[2 * (d & 1) + 1]
            its += ['v_accvgpr_read_b32 v%d, a%d' % (a, base + 2 * d),
                    'v_accvgpr_read_b32 v%d, a%d' % (b, base + 2 * d + 1),
                    'v_cvt_pk_bf16_f32 v%d, v%d, v%d' % (dst + 4 * t + d, a, b)]
        return its
    def h_items(n):
        its = []
        base = 128 + 16 * n
        for d in range(4):
            a, b, c, e = T[4 * (d & 1):4 * (d & 1) + 4]
            its += ['v_accvgpr_read_b32 v%d, a%d' % (a, base + 2 * d), 'v_accvgpr_read_b32 v%d, a%d' % (b, base + 8 + 2 * d),
                    'v_accvgpr_read_b32 v%d, a%d' % (c, base + 2 * d + 1), 'v_accvgpr_read_b32 v%d, a%d' % (e, base + 8 + 2 * d + 1),
                    'v_mul_f32 v%d, v%d, v%d' % (a, a, b), 'v_mul_f32 v%d, v%d, v%d' % (c, c, e),
                    'v_cvt_pk_bf16_f32 v%d, v%d, v%d' % (HF[n] + d, a, c)]
        return its
    direct = [int(x) for x in str(OPT['direct']).split(',')]
    parked = [ct for ct in range(14) if ct not in direct]
    assert len(parked) <= 8
    def yst(src, ct, q):
        return ('seq', ['s_add_u32 s%d, s%d, %d' % (sT0, sYP, (ct >> 1) * 4096),
                ('y', 'buffer_store_dwordx4 %s, v%d, s[%d:%d], s%d offen offset:%d%s' % (src, VL16, SWS, SWS + 3, sT0, (ct & 1) * 2048 + q * 1024, STF))])
    def yepi(ct):
        acc = YB[ct & 3]; its = []
        for d in range(8):
            if ct in direct:
                its.append('v_cvt_pk_bf16_f32 v%d, v%d, v%d' % (acc + d, acc + 2 * d, acc + 2 * d + 1))
                if d & 3 == 3: its.append(yst(vr(acc + d - 3, 4), ct, d >> 2))
            else:
                its += ['v_cvt_pk_bf16_f32 v%d, v%d, v%d' % (T[4 + (d & 3)], acc + 2 * d, acc + 2 * d + 1)]
                if d & 1: its += ['v_accvgpr_write_b32 a%d, v%d' % (128 + 8 * parked.index(ct) + d - 1, T[4 + ((d - 1) & 3)]),
                                  'v_accvgpr_write_b32 a%d, v%d' % (128 + 8 * parked.index(ct) + d, T[4 + (d & 3)])]
        return its
    k27 = idx[('p1', 27)]; kq0 = idx[('qk', 0)]
    qh = [(k27 + n + 2, hfirst[n], x) for n in range(7) for x in h_items(n)]
    def ydead(ct): return yfirst[ct + 4] if ct + 4 < 14 else (kq0 if (ct & 3) == 0 else idx[('qk', 1)] if (ct & 3) == 1 else idx[('qk', 1)] + 5)
    qe = [(ylast[ct] + 2, ydead(ct), x) for ct in range(14) for x in yepi(ct)]
    qq = [(kyp + 2, kq0 + t, x) for t in range(16) for x in conv_items(Q, t, T[0:4])]
    k = k27
    while qh or qe or qq:
        n = OPT['vq'] + (1 if qh else 0)
        while n > 0 or (qh and qh[0][1] <= k + 1) or (qe and qe[0][1] <= k + 1) or (qq and qq[0][1] <= k + 1):
            q_ = None
            if qh: q_ = qh if qh[0][0] <= k else None
            elif qq and qq[0][1] <= k + 2: q_ = qq
            elif qe and qe[0][0] <= k: q_ = qe
            elif qq: q_ = qq
            if not q_: break
            e, dl, x = q_.pop(0)
            assert e <= k < dl, (e, k, dl, x)
            gaps[k].append(x); n -= 1
        k += 1
    sys.stderr.write('conv sched ends at qk0%+d\n' % (k - kq0))
    kk = kq0 + 12
    for ct in parked:
        for q in range(2):
            gaps[kk].append(yst(ar(128 + 8 * parked.index(ct) + 4 * q, 4), ct, q)); kk += OPT['ypace']
    def exp_items(S, lo, P, sub=False):
        its = []
        for i in range(lo, lo + 8, 2):
            if sub:
                its += ['v_sub_f32 v%d, v%d, v%d' % (S + i, S + i, VMX), 'v_sub_f32 v%d, v%d, v%d' % (S + i + 1, S + i + 1, VMX)]
            its += ['v_exp_f32 v%d, v%d' % (S + i, S + i), 'v_exp_f32 v%d, v%d' % (S + i + 1, S + i + 1),
                    'v_add_f32 v%d, v%d, v%d' % (VL, VL, S + i), 'v_add_f32 v%d, v%d, v%d' % (VL, VL, S + i + 1),
                    'v_cvt_pk_bf16_f32 v%d, v%d, v%d' % (P + (i - lo) // 2, S + i, S + i + 1)]
        return its
    def max_items(S, dst):
        its = ['v_max3_f32 v%d, v%d, v%d, v%d' % (dst, S, S + 1, S + 2)]
        for i in range(3, 15, 2):
            its.append('v_max3_f32 v%d, v%d, v%d, v%d' % (dst, dst, S + i, S + i + 1))
        its.append('v_max_f32 v%d, v%d, v%d' % (dst, dst, S + 15))
        return its
    assert k <= idx[('qk', 1)] + 2
    vccbusy = set()
    for j in range(16):
        S = SB[j & 1]
        kb = idx[('pv', j)]
        if j == 0:
            ka = idx[('qk', 1)]
            its = max_items(S, VMX) + ['v_mov_b32 v%d, v%d' % (T[4], VMX), 'v_permlane32_swap_b32 v%d, v%d' % (VMX, T[4]),
                                       'v_max_f32 v%d, v%d, v%d' % (VMX, VMX, T[4])]
            spread(gaps, its, ka + 2, ka + 5)
            spread(gaps, exp_items(S, 0, PB[0], True), ka + 6, ka + 14)
            spread(gaps, exp_items(S, 8, PB[1], True), ka + 15, kb + 6)
            its = ['v_sub_f32 v%d, v%d, v%d' % (SB[1] + i, SB[1] + i, VMX) for i in range(16)]
            its += ['v_sub_f32 v%d, 0, v%d' % (NEGM + i, VMX) for i in range(16)]
            spread(gaps, its, kb + 3, kb + 11)
            spread(gaps, max_items(SB[1], T[5]), kb + 12, kb + 14)
        elif j < 15:
            ka = idx[('qk', j + 1)]
            spread(gaps, exp_items(S, 0, PB[0]), ka, ka + 9)
            spread(gaps, exp_items(S, 8, PB[1]), ka + 10, kb + 5)
            spread(gaps, max_items(SB[(j + 1) & 1], T[5]), kb + 6, kb + 14)
        else:
            gaps[kb - 1] += exp_items(S, 0, PB[0])
            spread(gaps, exp_items(S, 8, PB[1]), kb, kb + 6)
        if j < 15:
            gaps[kb + 14].append('v_cmp_lt_f32 vcc, s%d, v%d' % (sTHR, T[5]))
            gaps[kb + 15].insert(0, ('rare', j + 1))
            vccbusy.add(kb + 14)
    def vok(k): return k + 1 if k in vccbusy else k
    k5 = idx[('qk', 3)]
    its = ['v_mov_b32 v%d, 0' % VPOLL, 'buffer_load_dword v%d, v%d, s[%d:%d], 0 offen sc1' % (VNON, VPOLL, SDBG, SDBG + 3),
           'v_lshrrev_b32 v%d, 4, v%d' % (T[6], VL16),
           'v_cmp_gt_u32 vcc, %d, v%d' % (OPT.get('fw', 32), T[6]),
           'v_mov_b32 v%d, 0x%x' % (T[7], OOB),
           'v_lshlrev_b32 v%d, 2, v%d' % (T[8], T[6]),
           'v_and_b32 v%d, 15, v%d' % (VFL, T[6]),
           'v_cndmask_b32 v%d, v%d, v%d, vcc' % (VFO, T[7], T[8]),
           'v_mul_u32_u24 v%d, %d, v%d' % (VFL, FST, VFL),
           'v_and_b32 v%d, 31, v%d' % (T[7], T[6]), 'v_mul_u32_u24 v%d, 896, v%d' % (T[7], T[7]),
           'v_and_b32 v%d, 32, v%d' % (T[8], T[6]), 'v_add_u32 v%d, v%d, v%d' % (VXO, T[7], T[8])]
    spread(gaps, its, k5, k5 + 12)
    kp = vok(kk - OPT['ypace'] + OPT['ypd'])
    assert kp > k5 + 40
    gaps[kp] += [('nonce',), ('waittag', 'y'), 'buffer_store_dword v%d, v%d, s[%d:%d], s%d offen sc1' % (VNON, VFO, SWS, SWS + 3, sFP)]
    gaps[kp + OPT['yfl']] += ['buffer_load_dword v%d, v%d, s[%d:%d], s%d offen sc1' % (VPOLL, VFL, SWS, SWS + 3, sFC)]
    kq = vok(kp + OPT['yfl'] + OPT['ychk'])
    sys.stderr.write('ypub at iter %.1f, ychk at iter %.1f\n' % ((kp - kq0 - 16) / 32, (kq - kq0 - 16) / 32))
    gaps[kq] += [('poll', 'h', 0)]
    def pl(dst, so, off): return 'buffer_load_dwordx4 %s, v%d, s[%d:%d], s%d offen offset:%d sc1' % (ar(dst, 4), VL16, SWS, SWS + 3, so, off)
    lo, hi = kq + 1, o0 + OPT['yend']
    for i in range(32):
        gaps[lo + i * (hi - lo) // 32] += [pl(yq(i), sYB, (i & 1) * 1024)] + (['s_add_u32 s%d, s%d, %d' % (sYB, sYB, HS)] if i & 1 else [])
    g0 = idx[('pv', 15)] + 10
    its = [x for t in range(16) for x in conv_items(OF, t, T[0:4])]
    quota(gaps, its[:48], g0, 8)
    quota(gaps, its[48:], g0 + 6, 6)
    gaps[o0 + 26] += ['v_mov_b32 v%d, v%d' % (T[4], VL), 'v_mov_b32 v%d, v%d' % (T[5], VL)]
    gaps[o0 + 27] += ['v_permlane32_swap_b32 v%d, v%d' % (T[4], T[5])]
    gaps[o0 + 28] += ['v_add_f32 v%d, v%d, v%d' % (T[4], T[4], T[5])]
    gaps[o0 + 29] += ['v_rcp_f32 v%d, v%d' % (VRI, T[4])]
    its = ['s_lshr_b32 s%d, s%d, 1' % (sT1, sCT), 's_add_u32 s%d, s%d, 21' % (sT1, sT1),
           'v_bfe_u32 v%d, v%d, 4, 4' % (T[8], VL16),
           'v_sub_u32 v%d, s%d, v%d' % (VSTEP, sT1, T[8]),
           'v_mul_u32_u24 v%d, 37, v%d' % (VNEED, VSTEP),
           'v_lshrrev_b32 v%d, 8, v%d' % (VNEED, VNEED),
           'v_mul_u32_u24 v%d, 7, v%d' % (VNEED, VNEED),
           'v_sub_u32 v%d, v%d, v%d' % (VSTEP, VSTEP, VNEED),
           'v_add3_u32 v%d, v%d, v%d, 1' % (VNEED, VSTEP, VNON),
           's_add_u32 s%d, s%d, 128' % (sFC, sFC), 's_add_u32 s%d, s%d, 128' % (sFP, sFP)]
    spread(gaps, its, o0 + 48, o0 + 60)
    its = ['v_lshrrev_b32 v%d, 4, v%d' % (T[6], VL16),
           'v_lshrrev_b32 v%d, 3, v%d' % (T[7], T[6]),
           'v_xor_b32 v%d, v%d, v%d' % (T[7], T[7], T[6]),
           'v_and_b32 v%d, 4, v%d' % (T[7], T[7]),
           'v_lshlrev_b32 v%d, 1, v%d' % (T[7], T[7]),
           'v_bfe_u32 v%d, v%d, 3, 2' % (T[8], T[6]),
           'v_lshl_or_b32 v%d, v%d, 1, v%d' % (T[7], T[8], T[7]),
           'v_bfe_u32 v%d, v%d, 1, 1' % (T[8], T[6]),
           'v_or_b32 v%d, v%d, v%d' % (T[7], T[7], T[8]),
           'v_and_b32 v%d, 1, v%d' % (T[8], T[6]),
           'v_lshlrev_b32 v%d, 4, v%d' % (T[8], T[8]),
           'v_mov_b32 v%d, 0x3f80' % T[6],
           'v_lshlrev_b32 v%d, v%d, v%d' % (T[8], T[8], T[6])]
    for d in range(8):
        its += [('seq', ['v_cmp_eq_u32 vcc, %d, v%d' % (d, T[7]), 'v_cndmask_b32 v%d, 0, v%d, vcc' % (IA[0] + d, T[8])])]
    spread(gaps, its, o0 + 80, o0 + 94)
    def epi_items(u):
        its = []
        for n in range(2):
            acc = SACC[u & 1] + 16 * n
            for q in range(2):
                for d in range(4):
                    i = acc + 8 * q + 2 * d
                    its += ['v_mul_f32 v%d, v%d, v%d' % (i, i, VRI), 'v_mul_f32 v%d, v%d, v%d' % (i + 1, i + 1, VRI),
                            'v_cvt_pk_bf16_f32 v%d, v%d, v%d' % (ST + 8 * n + 4 * q + d, i, i + 1)]
                its.append(('tag', ('s', u), 'buffer_store_dwordx4 %s, v%d, s[%d:%d], s%d offen offset:%d%s' % (vr(ST + 8 * n + 4 * q, 4), VL16, SWS, SWS + 3, sSP, n * 2048 + q * 1024, STF)))
        if u < 6:
            its += [('seq', ['s_add_u32 s%d, s%d, 4096' % (sSP, sSP), 's_cmp_eq_u32 s%d, s%d' % (sSP, sSPE),
                    's_cselect_b32 s%d, 28672, 0' % sT0, 's_sub_u32 s%d, s%d, s%d' % (sSP, sSP, sT0)])]
        return its
    gaps[kt - 1].append(('noty',))
    spub = 'buffer_store_dword v%d, v%d, s[%d:%d], s%d offen sc1' % (VNON, VFO, SWS, SWS + 3, sFP)
    def sfl(u): return 'buffer_load_dword v%d, v%d, s[%d:%d], s%d offen sc1' % (VP2[u & 1], VFL, SWS, SWS + 3, sFC)
    LS = {k: [o0 + int(x) for x in str(OPT[k]).split(',')] for k in ('pub', 'fl', 'chk')}
    npub_pre = 0
    for u in range(7):
        k0 = o0 + 32 * (u + 1)
        spread(gaps, epi_items(u), k0 + (1 if u < 6 else 0), k0 + (OPT['epw'] if u < 6 else 6))
        if LS['pub'][u] < kt: npub_pre += 1
        gaps[LS['pub'][u]] += ['v_add_u32 v%d, 1, v%d' % (VNON, VNON), ('waittag', ('s', u)), spub]
    def rdy(vp): return ['v_sub_u32 v%d, v%d, v%d' % (vp, vp, VNEED), 'v_cmp_ge_u32 vcc, 7, v%d' % vp, 's_and_b32 s%d, vcc_lo, s%d' % (sRDY, sPEND)]
    def take(r0, r1):
        return ['s_ff1_i32_b32 s%d, s%d' % (sHA, sRDY), 's_bitset0_b32 s%d, s%d' % (sRDY, sHA), 's_bitset0_b32 s%d, s%d' % (sPEND, sHA),
                's_min_u32 s%d, s%d, 255' % (sHA, sHA), 's_mul_i32 s%d, s%d, %d' % (sHA, sHA, HS), 's_add_u32 s%d, s%d, s%d' % (sHA, sHA, sPB)] + \
               ['buffer_load_dwordx4 %s, v%d, s[%d:%d], s%d offen offset:%d sc1' % (r, VL16, SWS, SWS + 3, sHA, o) for r, o in ((r0, 0), (r1, 1024))]
    nfl = 0
    for gi in range(4):
        kl = LS['chk'][gi]
        if LS['fl'][gi] > o0:
            nfl += 1
            gaps[LS['fl'][gi]] += [sfl(nfl)]
            gaps[kl] += rdy(VP2[nfl & 1])
        for j in range(4):
            its = take(ar(32 * gi + 8 * j, 4), ar(32 * gi + 8 * j + 4, 4))
            if kl < kt:
                th = OPT['thin']
                gaps[kl + 1 + 2 * th * j] += its[:6]; gaps[kl + 2 + 2 * th * j] += its[6:7]; gaps[kl + 2 + th + 2 * th * j] += its[7:]
            else:
                assert kl + j < kt + 32 + 8 * gi + 2 * j
                gaps[kl + j] += its
    gaps[o0 + OPT['flt']] += [sfl(0)]
    ks_ = LS['chk'][-1]
    gaps[o0 + 110] += ['buffer_load_dwordx4 %s, v%d, s[%d:%d], s%d offen' % (vr(XF[0], 4), VXO, SX, SX + 3, sXO),
                       'buffer_load_dwordx4 %s, v%d, s[%d:%d], s%d offen offset:16' % (vr(XF[1], 4), VXO, SX, SX + 3, sXO)]
    Y = YACC; E = 112; XX = 0
    its = ['s_mov_b32 s%d, %s' % (sT3, f2h(KINV)), 's_mov_b32 s%d, %s' % (sT4, f2h(-KINV * math.log2(math.e)))]
    for d in range(8):
        its += ['v_lshlrev_b32 v%d, 16, v%d' % (XX + 2 * d, XF[d >> 2] + (d & 3)), 'v_and_b32 v%d, s%d, v%d' % (XX + 2 * d + 1, sMASK, XF[d >> 2] + (d & 3))]
    spread(gaps, its, kt + 12, kt + 20)
    its = ['v_mul_f32 v%d, s%d, v%d' % (E + i, sT4, Y + i) for i in range(16)]
    its += ['v_exp_f32 v%d, v%d' % (E + i, E + i) for i in range(16)]
    for i in range(16): its += ['v_mul_f32 v%d, s%d, v%d' % (Y + i, sT3, Y + i), 'v_add_f32 v%d, 1.0, v%d' % (E + i, E + i)]
    its += ['v_rcp_f32 v%d, v%d' % (E + i, E + i) for i in range(16)]
    its += ['v_mul_f32 v%d, v%d, v%d' % (Y + i, Y + i, E + i) for i in range(16)]
    spread(gaps, its, kt + 33, kt + 46)

    def emit_reads(k):
        s, rd, fn = M[k]
        assert s in certified, (k, s)
        af = AF[k % PF]
        for mn, w, base, off in rd:
            width = 4 if mn.endswith('b128') else 2
            g('%s %s, v%d offset:%d' % (mn, vr(af + w, width), base, off))
    certified = {0}
    dmaq = [x for s_ in range(OPT['ndp'], 4) for x in dma_items(s_)]
    for k in range(PF): emit_reads(k)
    for s in norm_items(0): g(s)
    since = 0
    stamp_at = {idx[('p1', 14)], kyp, idx[('qk', 0)], idx[('qk', 4)], idx[('qk', 8)], o0, kt}
    for x in str(OPT.get('tout', '')).split(','):
        if x: gaps[o0 + int(x)] += ['v_mov_b32 v%d, 0' % TA_, ('raw', 'buffer_load_dword v%d, v%d, s[%d:%d], s%d offen' % (TD_, TA_, SOUT, SOUT + 3, sXO))]
    if OPT.get('stk'): stamp_at = {o0 + int(x) for x in OPT['stk'].split(',')}
    if OPT.get('stp'): stamp_at = {int(x) for x in OPT['stp'].split(',')}
    stamp4 = {0, idx[('qk', 0)], o0, kt}
    rare_sites = []
    oolines = []
    def spin(name, back, vp, vn, load):
        o = oolines
        o.append('%s:' % name)
        if vn:
            o.append('    s_cmp_lt_u32 s%d, 4' % sI)
            o.append('    s_cbranch_scc1 %s' % back)
        o.append('    s_mov_b32 s%d, 0' % sSPIN)
        o.append('%s_l:' % name)
        o.append('    s_sleep 2')
        o.append('    ' + load)
        o.append('    s_add_u32 s%d, s%d, 1' % (sSPIN, sSPIN))
        o.append('    s_cmp_gt_u32 s%d, %d' % (sSPIN, SPIN_MAX))
        o.append('    s_cbranch_scc1 %s' % back)
        o.append('    s_waitcnt vmcnt(0)')
        for x in (vp if isinstance(vp, list) else [vp]):
            o.append('    ' + x)
            o.append('    s_nop 1')
        o.append('    s_cbranch_vccnz %s_l' % name)
        o.append('    s_branch %s' % back)
    for k in range(NM):
        s, rd, fn = M[k]
        if k in stamp_at: st(1)
        if k in stamp4: st(4); st(4, real=True)
        if k % 2 == 0 and k + 1 < NM:
            a = AF[(k + 1) % PF]
            g.wait_regs(['v%d' % (a + 3), 'v%d' % (a + 1)])
        g(fn(AF[k % PF]))
        if k in bar_at:
            sb = bar_at[k]
            assert len(dmaq) <= 16
            g.wait_tag(('st', sb + 1), False)
            if not (OPT.get('xbar') and sb >= 2): g('s_barrier')
            certified.add(sb + 1)
            if sb + 4 < NST and not (OPT.get('xdma') and sb >= 1): dmaq += dma_items(sb + 4)
            since = OPT['dmaper']
        dma = None
        since += 1
        if dmaq and (since >= (OPT['dmaper'] if k < o0 else OPT['dmo']) or len(dmaq) > 8):
            dma = dmaq.pop(0); since = 0
            if dma[0]: dma[0]()
        if k + PF < NM: emit_reads(k + PF)
        if dma: dma[1]()
        for it in gaps[k]:
            if isinstance(it, str):
                if OPT.get('xvalu') and it.startswith('v_') and (k < k27 - 15 or idx[('qk', 4)] <= k < idx[('pv', 14)]) and 'v_cmp' not in it and ('v%d,' % TA_) not in it and ('v%d,' % TB_) not in it: continue
                g(it); continue
            if it[0] == 'rare':
                j = it[1]
                g('s_cbranch_vccnz L1_tr%d' % j)
                g.label('L1_bk%d' % j)
                rare_sites.append(j)
            elif it[0] == 'tag': g(it[2], tag=it[1])
            elif it[0] == 'label': g.label(it[1])
            elif it[0] == 'raw':
                g('s_nop 0'); g.raw('    ' + it[1]); g.pos += 1; g.vm.append((None, {'v%d' % TD_}, False))
            elif it[0] == 'waittag': g.wait_tag(it[1], False)
            elif it[0] == 'nonce':
                c = 'v_cmp_eq_u32 vcc, 0, v%d' % VNON
                g(c); g('s_nop 1'); g('s_cbranch_vccnz L1_spn'); g.label('L1_spn_b')
                spin('L1_spn', 'L1_spn_b', c, None, 'buffer_load_dword v%d, v%d, s[%d:%d], 0 offen sc1' % (VNON, VPOLL, SDBG, SDBG + 3))
            elif it[0] == 'poll':
                vp, vn = VPOLL, VNON
                c = 'v_cmp_ne_u32 vcc, v%d, v%d' % (vp, vn)
                nm = 'L1_sp' + it[1]
                g(c); g('s_nop 1'); g('s_cbranch_vccnz ' + nm); g.label(nm + '_b')
                spin(nm, nm + '_b', c, True, 'buffer_load_dword v%d, v%d, s[%d:%d], s%d offen sc1' % (vp, VFL, SWS, SWS + 3, sFC))
            elif it[0] == 'call': it[1]()
            elif it[0] == 'seq':
                for x in it[1]: (g(x) if isinstance(x, str) else g(x[1], tag=x[0]))
            elif it[0] == 'noty':
                g('s_cmp_lt_u32 s%d, 4' % sI)
                g('s_cbranch_scc1 L1_noty')
                nst_noty = st.n
    st(1)
    for x in rdy(VP2[0]): g(x)
    g('s_mov_b32 s%d, 0' % sSPIN)
    R = g.raw
    for r in range(16):
        R('    s_cmp_eq_u32 s%d, 0' % sPEND)
        R('    s_cbranch_scc1 L1_sum%d' % r)
        R('L1_r%d:' % r)
        R('    s_cmp_lg_u32 s%d, 0' % sRDY)
        R('    s_cbranch_scc1 L1_g%d' % r)
        if OPT['slp']: R('    s_sleep %d' % OPT['slp'])
        if OPT['pmask']:
            R('    s_mov_b32 exec_lo, s%d' % sPEND)
            R('    s_mov_b32 exec_hi, 0')
        R('    ' + sfl(0))
        if OPT['pmask']: R('    s_mov_b64 exec, -1')
        R('    s_add_u32 s%d, s%d, 1' % (sSPIN, sSPIN))
        R('    s_cmp_gt_u32 s%d, %d' % (sSPIN, SPIN_MAX))
        R('    s_cbranch_scc1 L1_sum%d' % r)
        R('    s_waitcnt vmcnt(0)')
        for x in rdy(VP2[0]): R('    ' + x); R('    s_nop 1')
        R('    s_branch L1_r%d' % r)
        R('L1_g%d:' % r)
        for x in take(vr(128 + 8 * r, 4), vr(132 + 8 * r, 4)): R('    ' + x)
    for r in range(16, -1, -1):
        R('L1_sum%d:' % r)
        if r:
            R('    s_waitcnt vmcnt(0)')
            for q in range(2): R('    ' + MF(vr(SA, 16), vr(IA[q], 4), vr(128 + 8 * (r - 1) + 4 * q, 4), vr(SA, 16)))
    g.vm = []; g.fence()
    g('s_nop 15')
    for i in range(16): g('v_fma_f32 v%d, v%d, v%d, v%d' % (XX + i, Y + i, SA + i, XX + i))
    for d in range(8): g('v_cvt_pk_bf16_f32 v%d, v%d, v%d' % (E + d, XX + 2 * d, XX + 2 * d + 1))
    g('buffer_store_dwordx4 %s, v%d, s[%d:%d], s%d offen' % (vr(E, 4), VXO, SOUT, SOUT + 3, sXO))
    g('buffer_store_dwordx4 %s, v%d, s[%d:%d], s%d offen offset:16' % (vr(E + 4, 4), VXO, SOUT, SOUT + 3, sXO))
    st(5); st(real=True)
    st.dump(g, SWS, 2, STAMP_BASE, T[0])
    g.label('L1_end')
    g('s_endpgm')
    r = Gen()
    r.label('L1_noty')
    r('s_nop 15')
    for it in epi_items(6): r(it if isinstance(it, str) else it[2])
    r('v_add_u32 v%d, %d, v%d' % (VNON, 7 - npub_pre, VNON))
    r.waitall()
    r(spub)
    if OPT['stamp']:
        for i in range(nst_noty, st.n): r('s_memrealtime s[%d:%d]' % (sSTAMP + 2 * i, sSTAMP + 2 * i + 1))
        st.dump(r, SWS, 2, STAMP_BASE, T[0])
    r('s_endpgm')
    g.out += r.out + oolines
    for j in rare_sites:
        g.label('L1_tr%d' % j)
        g.raw('    s_mov_b32 s%d, %d' % (sIDX, j))
        g.raw('    s_branch L1_rare%d' % (j & 1))
    for par in range(2):
        r = Gen()
        S = SB[par]
        r.label('L1_rare%d' % par)
        r('s_nop 15')
        r('v_mov_b32 v%d, v%d' % (T[4], T[5]))
        r('v_permlane32_swap_b32 v%d, v%d' % (T[5], T[4]))
        r('v_max3_f32 v%d, v%d, v%d, 0' % (T[5], T[5], T[4]))
        r('v_exp_f32 v%d, -v%d' % (T[4], T[5]))
        for i in range(16):
            r('v_sub_f32 v%d, v%d, v%d' % (S + i, S + i, T[5]))
            r('v_sub_f32 v%d, v%d, v%d' % (NEGM + i, NEGM + i, T[5]))
        r('v_mul_f32 v%d, v%d, v%d' % (VL, VL, T[4]))
        for i in range(128):
            tt = T[i & 1]
            r('v_accvgpr_read_b32 v%d, a%d' % (tt, i))
            r('v_mul_f32 v%d, v%d, v%d' % (tt, tt, T[4]))
            r('v_accvgpr_write_b32 a%d, v%d' % (i, tt))
        r('s_nop 3')
        js = [j for j in rare_sites if (j & 1) == par]
        for j in js[:-1]:
            r('s_cmp_eq_u32 s%d, %d' % (sIDX, j))
            r('s_cbranch_scc1 L1_bk%d' % j)
        if par: r.label('L1_last')
        r('s_branch L1_bk%d' % js[-1])
        g.out += r.out
    sys.stderr.write('K1: %d mfma, nops %d, counts %s\n' % (NM, g.nnop, g.count))
    return g.out

def main():
    out = []
    hdr = open('cdna_kernels/%s.s.ref' % NAME).read().split('\n')
    for l in hdr:
        if l.startswith('; @launch'): break
        out.append(l)
    nm = NAME + '_kernel'
    out.append('; @launch grid=(256,1,1) block=(256,1,1) lds=163840')
    out.append('.amdgcn_target "amdgcn-amd-amdhsa--gfx950"')
    out.append('.text')
    out += ['.globl %s' % nm, '.p2align 8', '.type %s,@function' % nm]
    out += gen_k1()
    out.append('.section .rodata,"a"')
    out += ['.p2align 6', '.amdhsa_kernel %s' % nm, '  .amdhsa_next_free_vgpr 512', '  .amdhsa_next_free_sgpr 102',
            '  .amdhsa_accum_offset 256', '  .amdhsa_group_segment_fixed_size 0', '  .amdhsa_kernarg_size 96',
            '  .amdhsa_user_sgpr_count 2', '  .amdhsa_user_sgpr_kernarg_segment_ptr 1',
            '  .amdhsa_system_sgpr_workgroup_id_x 1', '.end_amdhsa_kernel']
    open(sys.argv[1], 'w').write('\n'.join(out) + '\n')
main()
```
